```python
import torch

def _softmax(x, axis=-1):
    return torch.softmax(x, dim=axis)
def _gelu(x):
    return torch.nn.functional.gelu(x, approximate="tanh")
def _silu(x):
    return torch.nn.functional.silu(x)
def _sigmoid(x):
    return torch.sigmoid(x)
def _layernorm(x, axis=-1, eps=1e-5):
    m = x.mean(dim=axis, keepdim=True)
    v = x.var(dim=axis, keepdim=True, unbiased=False)
    return (x - m) / torch.sqrt(v + eps)
def _scatter_add(tgt, idx, src, axis=0):
    return tgt.clone().index_add_(axis, idx, src)
def _segment_sum(src, seg, n):
    out = torch.zeros((n,) + src.shape[1:], dtype=src.dtype)
    return out.index_add_(0, seg, src)
def _pad(x, pw):
    flat = tuple(v for pair in reversed(pw) for v in pair)
    return torch.nn.functional.pad(x, flat)

kernel_name = 'concat_heads__mha_block_cached__mha_block_cached__near_ridge'

def setup_inputs():

    _w = (lambda a: (lambda t: t.to(torch.bfloat16) if t.is_floating_point() else t)(torch.as_tensor(a)))
    def _A_setup():
        B, Sq, D = 8, 192, 576
        H, Sk, Dh = 32, 512, 128
        return {
            "x": _w((lambda *s: torch.randn(*s, dtype=torch.bfloat16) * 0.8)(B, Sq, D)),
            "k_cache": _w((lambda *s: torch.randn(*s, dtype=torch.bfloat16) * 0.8)(B, H, Sk, Dh)),
            "v_cache": _w((lambda *s: torch.randn(*s, dtype=torch.bfloat16) * 0.05)(B, H, Sk, Dh)),
            "wq": _w((lambda *s: torch.randn(*s, dtype=torch.bfloat16) * 0.8)(D, H * Dh) * (D ** -0.5)),
            "wo": _w((lambda *s: torch.randn(*s, dtype=torch.bfloat16) * 0.05)(H * Dh, D) * ((H * Dh) ** -0.5)),
        }
    _A_in = _A_setup()

    def _B_setup():
        B, Sq, D = 8, 192, 576
        H, Sk, Dh = 32, 512, 128
        return {
            "x": _w((lambda *s: torch.randn(*s, dtype=torch.bfloat16) * 0.8)(B, Sq, D)),
            "k_cache": _w((lambda *s: torch.randn(*s, dtype=torch.bfloat16) * 0.8)(B, H, Sk, Dh)),
            "v_cache": _w((lambda *s: torch.randn(*s, dtype=torch.bfloat16) * 0.05)(B, H, Sk, Dh)),
            "wq": _w((lambda *s: torch.randn(*s, dtype=torch.bfloat16) * 0.8)(D, H * Dh) * (D ** -0.5)),
            "wo": _w((lambda *s: torch.randn(*s, dtype=torch.bfloat16) * 0.05)(H * Dh, D) * ((H * Dh) ** -0.5)),
        }
    _B_in = _B_setup()

    return {
        "A_x": _A_in["x"],
        "A_k_cache": _A_in["k_cache"],
        "A_v_cache": _A_in["v_cache"],
        "A_wq": _A_in["wq"],
        "A_wo": _A_in["wo"],
        "B_x": _B_in["x"],
        "B_k_cache": _B_in["k_cache"],
        "B_v_cache": _B_in["v_cache"],
        "B_wq": _B_in["wq"],
        "B_wo": _B_in["wo"],
    }

def reference(A_x, A_k_cache, A_v_cache, A_wq, A_wo, B_x, B_k_cache, B_v_cache, B_wq, B_wo):
    def _A_ref(x, k_cache, v_cache, wq, wo):
        B, Sq, D = x.shape
        H, Dh = 32, 128
        q = (lambda x, *d: x.permute(*d))((x @ wq).reshape(B, Sq, H, Dh), 0, 2, 1, 3)
        scores = torch.einsum("bhqd,bhkd->bhqk", q, k_cache) * (Dh ** -0.5)
        p = _softmax(scores, axis=-1)
        o = torch.einsum("bhqk,bhkd->bhqd", p, v_cache)
        return (lambda x, *d: x.permute(*d))(o, 0, 2, 1, 3).reshape(B, Sq, H * Dh) @ wo

    def _B_ref(x, k_cache, v_cache, wq, wo):
        B, Sq, D = x.shape
        H, Dh = 32, 128
        q = (lambda x, *d: x.permute(*d))((x @ wq).reshape(B, Sq, H, Dh), 0, 2, 1, 3)
        scores = torch.einsum("bhqd,bhkd->bhqk", q, k_cache) * (Dh ** -0.5)
        p = _softmax(scores, axis=-1)
        o = torch.einsum("bhqk,bhkd->bhqd", p, v_cache)
        return (lambda x, *d: x.permute(*d))(o, 0, 2, 1, 3).reshape(B, Sq, H * Dh) @ wo

    a = _A_ref(A_x, A_k_cache, A_v_cache, A_wq, A_wo)
    b = _B_ref(B_x, B_k_cache, B_v_cache, B_wq, B_wo)
    return torch.concatenate([a, b], axis=-1)
```

```python
K = "concat_heads__mha_block_cached__mha_block_cached__near_ridge_kernel"
def header(L, launches, ):
    for l in launches: L.append(l)
    L.append('.amdgcn_target "amdgcn-amd-amdhsa--gfx950"')
    L.append(".text")
def kstart(L, name):
    L.append(f".globl {name}")
    L.append(".p2align 8")
    L.append(f".type {name},@function")
    L.append(f"{name}:")
def kdesc(L, name, vgpr=256, agpr=0, sgpr=96):
    L.append('.section .rodata,"a"')
    L.append(".p2align 6")
    L.append(f".amdhsa_kernel {name}")
    acc = (vgpr + 3)//4*4
    L.append(f"  .amdhsa_next_free_vgpr {acc + agpr if agpr else vgpr}")
    L.append(f"  .amdhsa_next_free_sgpr {sgpr}")
    L.append(f"  .amdhsa_accum_offset {acc}")
    L.append("  .amdhsa_group_segment_fixed_size 0")
    L.append("  .amdhsa_kernarg_size 104")
    L.append("  .amdhsa_user_sgpr_count 2")
    L.append("  .amdhsa_user_sgpr_kernarg_segment_ptr 1")
    L.append("  .amdhsa_system_sgpr_workgroup_id_x 1")
    L.append(".end_amdhsa_kernel")

class Asm:
    def __init__(self):
        self.L = []
        self.vm = []
        self.lg = []
    def e(self, s):
        self.L.append(s)
    def c(self, s):
        self.L.append("; " + s)
    def vmem(self, s, tag):
        self.L.append(s); self.vm.append(tag)
    def lds(self, s, tag):
        self.L.append(s); self.lg.append(tag)
    def _n(self, q, tags, mx):
        idx = -1
        for i, t in enumerate(q):
            if t in tags: idx = i
        if idx < 0: return None
        return min(len(q) - 1 - idx, mx)
    def wait(self, vm=None, lg=None):
        parts = []
        if vm is not None:
            n = 0 if vm == "all" else self._n(self.vm, set(vm), 63)
            if n is not None:
                parts.append(f"vmcnt({n})")
                self.vm = self.vm[len(self.vm) - n:] if n > 0 else []
        if lg is not None:
            n = 0 if lg == "all" else self._n(self.lg, set(lg), 15)
            if n is not None:
                parts.append(f"lgkmcnt({n})")
                self.lg = self.lg[len(self.lg) - n:] if n > 0 else []
        if parts: self.L.append("s_waitcnt " + " ".join(parts))
    def do(self, item):
        if item is None: return
        if isinstance(item, str): self.e(item)
        elif isinstance(item, list):
            for x in item: self.do(x)
        elif callable(item): item(self)
        elif item[0] == 'vm': self.vmem(item[1], item[2])
        elif item[0] == 'lds': self.lds(item[1], item[2])
        elif item[0] == 'wait': self.wait(vm=item[1], lg=item[2])
        else: raise ValueError(item)
    def block(self, mfmas, gaps):
        for i, m in enumerate(mfmas):
            self.do(m)
            if i < len(gaps): self.do(gaps[i])
        for g in gaps[len(mfmas):]: self.do(g)
    def text(self):
        return "\n".join(self.L) + "\n"

def vr(a, n=1): return f"v{a}" if n == 1 else f"v[{a}:{a+n-1}]"
def ar(a, n=1): return f"a{a}" if n == 1 else f"a[{a}:{a+n-1}]"
def sr(a, n=1): return f"s{a}" if n == 1 else f"s[{a}:{a+n-1}]"
def spread(items, ngaps, start=0, end=None):
    if end is None: end = ngaps
    g = [[] for _ in range(ngaps)]
    n = len(items); w = end - start
    for i, it in enumerate(items):
        g[start + (i * w) // max(n, 1)].append(it)
    return g
def merge(*gs):
    n = max(len(g) for g in gs)
    out = [[] for _ in range(n)]
    for g in gs:
        for i, x in enumerate(g): out[i] += x
    return out
```

```python
from asmlib import *

SLOT = 8192
WOFF = [49152, 24576, 40960, 16384]
X0 = 139264
X1P = [57344, 122880, 131072]
X0P = [X0, X0 + 8192, X0 + 16384]
CSCALE = 1.4426950408889634 * (128 ** -0.5)
import struct
def f2u(x): return struct.unpack("<I", struct.pack("<f", x))[0]

vKRD, vVRD, vKDMA, vVDMA, vL = 1, 9, 13, 17, 18
vWRD, vWDMA, vXDMA, vX0RD, vX1RD = 21, 25, 29, 31, 35
vT = 47
vDUMMY = 63
vQACC = 64
vS = [64, 80]; vP = [96, 104]; vNEGM = 112; vQF = 160
aO = 0; aKF = 192; aVF = 224
sK, sV, sX, sW, sO = 8, 12, 16, 20, 24
sMB, sKV, sXO, sWO, sXM, sWV, sHS, sRH, sBR, sB, sH = 28, 29, 32, 33, 34, 35, 36, 37, 38, 39, 40
sSC = 42
sTMP = 44
sOO = 30
sSTAMP = 64

MF = "v_mfma_f32_32x32x16_bf16"

def gen_k1(a, name, kvflags="nt", stamps=False, oflags="sc1", prefetch_code=True, end_label="L_k1_code_end", samekv=False):
    e = a.e
    nstamp = [0]
    def stamp():
        if not stamps: return
        k = nstamp[0]; nstamp[0] += 1
        a.wait(lg="all")
        e(f"s_memtime s[96:97]")
        e(f"s_memrealtime s[98:99]")
        e("s_waitcnt lgkmcnt(0)")
        e(f"s_mov_b32 s{sSTAMP+k}, s96")
        e(f"s_mov_b32 s{sSTAMP+16+k}, s98")
    kstart(a.L, name)
    e("s_cmp_ge_u32 s2, 256")
    e(f"s_cbranch_scc1 L_end_{name}")
    e("s_load_dwordx8 s[48:55], s[0:1], 0")
    e("s_load_dwordx8 s[56:63], s[0:1], 40")
    e("s_load_dwordx2 s[4:5], s[0:1], 96")
    if stamps:
        e("s_memrealtime s[98:99]")
        e("s_waitcnt lgkmcnt(0)")
        e("s_mov_b32 s95, s98")
    e(f"v_lshrrev_b32 v{vT}, 6, v0")
    e("v_and_b32 v0, 63, v0")
    e(f"v_readfirstlane_b32 s{sWV}, v{vT}")
    e("s_and_b32 s3, s2, 7")
    e(f"s_lshr_b32 s{sBR}, s3, 2")
    e("s_and_b32 s3, s3, 3")
    e("s_lshr_b32 s6, s2, 3")
    e(f"s_and_b32 s{sB}, s6, 7")
    e("s_lshr_b32 s6, s6, 3")
    e("s_lshl_b32 s3, s3, 2")
    e("s_add_u32 s3, s3, s6")
    e(f"s_lshr_b32 s{sHS}, s{sWV}, 1")
    e(f"s_and_b32 s{sRH}, s{sWV}, 1")
    e("s_lshl_b32 s3, s3, 1")
    e(f"s_add_u32 s{sH}, s3, s{sHS}")
    e(f"s_lshl_b32 s6, s{sHS}, 16")
    e(f"s_lshl_b32 s7, s{sRH}, 12")
    e(f"s_add_u32 s{sMB}, s6, s7")
    e(f"s_lshl_b32 s{sKV}, s{sB}, 5")
    e(f"s_add_u32 s{sKV}, s{sKV}, s{sH}")
    e(f"s_lshl_b32 s{sKV}, s{sKV}, 17")
    if samekv: e(f"s_lshl_b32 s{sKV}, s{sHS}, 17")
    e(f"s_mul_i32 s{sXO}, s{sB}, 221184")
    e(f"s_lshl_b32 s{sWO}, s{sH}, 8")
    e(f"s_lshl_b32 s{sXM}, s{sWV}, 11")
    e(f"s_lshl_b32 s{sOO}, s{sBR}, 3")
    e(f"s_add_u32 s{sOO}, s{sOO}, s{sB}")
    e(f"s_mul_i32 s{sOO}, s{sOO}, 6")
    e(f"s_mul_i32 s{sTMP}, s{sRH}, 3")
    e(f"s_add_u32 s{sOO}, s{sOO}, s{sTMP}")
    e(f"s_lshl_b32 s{sOO}, s{sOO}, 18")
    e(f"s_lshl_b32 s{sTMP}, s{sH}, 13")
    e(f"s_add_u32 s{sOO}, s{sOO}, s{sTMP}")
    e(f"s_mov_b32 s{sSC}, {f2u(CSCALE):#x}")
    e(f"s_mov_b32 s{sSC+1}, {f2u(CSCALE):#x}")
    q, hh, q15, row4, t0, t1, t2, t3 = [vT + i for i in range(8)]
    e(f"v_and_b32 v{q}, 31, v0")
    e(f"v_lshrrev_b32 v{hh}, 5, v0")
    e(f"v_and_b32 v{q15}, 15, v0")
    e(f"v_lshrrev_b32 v{row4}, 4, v0")
    e(f"v_lshrrev_b32 v{t0}, 3, v0")
    e(f"s_lshl_b32 s7, s{sWV}, 4")
    e(f"v_add_u32 v{t0}, s7, v{t0}")
    e(f"v_mul_u32_u24 v{t0}, 1152, v{t0}")
    e(f"v_and_b32 v{t1}, 7, v0")
    for ee in range(2):
        e(f"v_add_u32 v{t2}, {4*ee}, v{row4}")
        e(f"v_xor_b32 v{t2}, v{t1}, v{t2}")
        e(f"v_lshlrev_b32 v{t2}, 4, v{t2}")
        e(f"v_add_u32 v{t2}, v{t0}, v{t2}")
        e(f"v_add_u32 v{vXDMA+ee}, {ee*(8*1152-1024)}, v{t2}")
    e(f"s_lshl_b32 s7, s{sRH}, 4")
    e(f"v_add_u32 v{t0}, s7, v{row4}")
    e(f"v_lshlrev_b32 v{t1}, 2, v{row4}")
    e(f"v_xor_b32 v{t1}, v{q15}, v{t1}")
    e(f"v_lshlrev_b32 v{t1}, 4, v{t1}")
    e(f"v_lshlrev_b32 v{t2}, 13, v{t0}")
    e(f"v_add_u32 v{t2}, v{t2}, v{t1}")
    for m in range(4):
        e(f"v_add_u32 v{vWDMA+m}, {m*(32768-1024)}, v{t2}")
    e(f"v_lshlrev_b32 v{t2}, 8, v{t0}")
    e(f"v_add_u32 v{vVDMA}, v{t2}, v{t1}")
    for m in range(4):
        e(f"v_add_u32 v{t3}, {4*m}, v{row4}")
        e(f"v_xor_b32 v{t3}, v{q15}, v{t3}")
        e(f"v_lshlrev_b32 v{t3}, 4, v{t3}")
        e(f"v_add_u32 v{vKDMA+m}, v{t2}, v{t3}")
    e("s_waitcnt lgkmcnt(0)")
    e(f"s_cmp_eq_u32 s{sBR}, 0")
    for (dst, off, size) in ((sX, 0, 1769472), (sK, 2, 33554432), (sV, 4, 33554432), (sW, 6, 4718592)):
        e(f"s_cselect_b32 s{dst}, s{48+off}, s{56+off}")
        e(f"s_cselect_b32 s{dst+1}, s{49+off}, s{57+off}")
        e(f"s_mov_b32 s{dst+2}, {size}")
        e(f"s_mov_b32 s{dst+3}, 0x20000")
    e(f"s_mov_b32 s{sO}, s4")
    e(f"s_mov_b32 s{sO+1}, s5")
    e(f"s_mov_b32 s{sO+2}, 25165824")
    e(f"s_mov_b32 s{sO+3}, 0x20000")

    def dmaX(c):
        items = []
        P = X0P if c % 2 == 0 else X1P
        for p in range(3):
            items.append([f"s_add_u32 m0, s{sXM}, {P[p]}", f"s_add_u32 s{sTMP}, s{sXO}, {c*128 + p*73728}"])
            for ee in range(2):
                items.append(('vm', f"buffer_load_dwordx4 v{vXDMA+ee}, s[{sX}:{sX+3}], s{sTMP} offen offset:{ee*1024} lds", f"X{c}"))
        return items
    def dmaW(s):
        items = [[f"s_add_u32 m0, s{sMB}, {WOFF[s%4]}", f"s_add_u32 s{sTMP+1}, s{sWO}, {s*262144}"]]
        for m in range(4):
            items.append(('vm', f"buffer_load_dwordx4 v{vWDMA+m}, s[{sW}:{sW+3}], s{sTMP+1} offen offset:{m*1024} lds", f"W{s}"))
        return items
    def dmaK(i):
        items = [[f"s_add_u32 m0, s{sMB}, {(i%4)*SLOT}", f"s_add_u32 s{sTMP+2}, s{sKV}, {i*8192}"]]
        for m in range(4):
            items.append(('vm', f"buffer_load_dwordx4 v{vKDMA+m}, s[{sK}:{sK+3}], s{sTMP+2} offen offset:{m*1024} {kvflags} lds", f"K{i}"))
        return items
    def dmaV(i):
        items = [[f"s_add_u32 m0, s{sMB}, {32768 + (i%4)*SLOT}", f"s_add_u32 s{sTMP+3}, s{sKV}, {i*8192}"]]
        for m in range(4):
            items.append(('vm', f"buffer_load_dwordx4 v{vVDMA}, s[{sV}:{sV+3}], s{sTMP+3} offen offset:{m*1024} {kvflags} lds", f"V{i}"))
        return items

    for it in dmaX(0) + dmaW(0) + dmaW(1) + dmaX(1) + dmaW(2) + dmaW(3): a.do(it)
    if prefetch_code:
        e("s_getpc_b64 s[6:7]")
        e(f"v_lshlrev_b32 v{t0}, 7, v0")
        e(f"s_lshl_b32 s3, s{sWV}, 13")
        e(f"v_add_u32 v{t0}, s3, v{t0}")
        for k in range(2):
            e(f"v_add_u32 v{t1}, {k*32768}, v{t0}")
            e(f"v_min_u32 v{t1}, {end_label}-L_pf_base, v{t1}")
            a.vmem(f"global_load_dword v{vDUMMY}, v{t1}, s[6:7]", "PF")
        a.L.insert(a.L.index("s_getpc_b64 s[6:7]") + 1, "L_pf_base:")

    e(f"s_lshl_b32 s6, s{sHS}, 16")
    e(f"v_xor_b32 v{t0}, v{hh}, v{q15}")
    e(f"v_lshlrev_b32 v{t0}, 4, v{t0}")
    e(f"v_lshlrev_b32 v{t1}, 8, v{q}")
    e(f"v_add3_u32 v{t0}, v{t0}, v{t1}, s6")
    for c in range(8):
        e(f"v_xor_b32 v{vKRD+c}, {32*c}, v{t0}")
    r_, c_ = t1, t2
    e(f"v_lshrrev_b32 v{r_}, 2, v{q15}")
    e(f"v_and_b32 v{c_}, 3, v0")
    e(f"v_and_b32 v{t3}, 1, v{c_}")
    e(f"v_lshlrev_b32 v{t3}, 4, v{t3}")
    e(f"v_lshrrev_b32 v{c_}, 1, v{c_}")
    e(f"v_lshlrev_b32 v{c_}, 3, v{c_}")
    e(f"v_or_b32 v{t3}, v{t3}, v{c_}")
    e(f"v_and_b32 v{c_}, 1, v{row4}")
    e(f"v_lshlrev_b32 v{c_}, 5, v{c_}")
    e(f"v_or_b32 v{t3}, v{t3}, v{c_}")
    e(f"v_lshlrev_b32 v{c_}, 6, v{r_}")
    e(f"v_or_b32 v{t3}, v{t3}, v{c_}")
    e(f"v_add_u32 v{t3}, s6, v{t3}")
    e(f"v_lshlrev_b32 v{c_}, 2, v{hh}")
    e(f"v_add_u32 v{c_}, v{c_}, v{r_}")
    e(f"v_lshlrev_b32 v{c_}, 8, v{c_}")
    e(f"v_add_u32 v{c_}, v{c_}, v{t3}")
    e(f"v_add_u32 v{c_}, 32768, v{c_}")
    for t in range(4):
        e(f"v_xor_b32 v{vVRD+t}, {64*t}, v{c_}")
    e(f"v_lshlrev_b32 v{c_}, 3, v{hh}")
    e(f"v_add_u32 v{c_}, v{c_}, v{r_}")
    e(f"v_lshlrev_b32 v{c_}, 8, v{c_}")
    e(f"v_add_u32 v{c_}, v{c_}, v{t3}")
    for t in range(4):
        e(f"v_xor_b32 v{vWRD+t}, {64*t}, v{c_}")
    e(f"v_lshrrev_b32 v{t0}, 1, v{q}")
    e(f"v_and_b32 v{t0}, 7, v{t0}")
    e(f"v_xor_b32 v{t0}, v{hh}, v{t0}")
    e(f"v_lshlrev_b32 v{t0}, 4, v{t0}")
    e(f"v_lshlrev_b32 v{t1}, 7, v{q}")
    e(f"v_add_u32 v{t0}, v{t0}, v{t1}")
    e(f"s_mul_i32 s3, s{sRH}, 12288")
    e(f"s_add_u32 s3, s3, {X0}")
    e(f"v_add_u32 v{t1}, s3, v{t0}")
    for ks in range(4):
        e(f"v_xor_b32 v{vX0RD+ks}, {32*ks}, v{t1}")
    x1 = lambda T: X1P[T >> 1] + (T & 1) * 4096
    e(f"s_cmp_eq_u32 s{sRH}, 0")
    for j in range(3):
        e(f"s_mov_b32 s6, {x1(j)}")
        e(f"s_mov_b32 s7, {x1(3+j)}")
        e(f"s_cselect_b32 s3, s6, s7")
        e(f"v_add_u32 v{t1}, s3, v{t0}")
        for ks in range(4):
            e(f"v_xor_b32 v{vX1RD+4*j+ks}, {32*ks}, v{t1}")
    for j in range(3):
        e(f"v_mov_b32 v{vL+j}, 0")

    aW = lambda buf, t: 192 + 16*buf + 4*t
    aX = lambda buf, j: 224 + 12*buf + 4*j
    def q_reads(kap):
        s = kap >> 1; ks2 = kap & 1; c = kap >> 2; ks = kap & 3; buf = kap & 1
        it = []
        for j in range(3):
            if c % 2 == 0:
                it.append(('lds', f"ds_read_b128 {ar(aX(buf,j),4)}, v{vX0RD+ks} offset:{j*4096}", f"qf{kap}"))
            else:
                it.append(('lds', f"ds_read_b128 {ar(aX(buf,j),4)}, v{vX1RD+4*j+ks}", f"qf{kap}"))
        for t in range(4):
            off = WOFF[s % 4] + ks2*4096
            it.append(('lds', f"ds_read_b64_tr_b16 {ar(aW(buf,t),2)}, v{vWRD+t} offset:{off}", f"qf{kap}"))
            it.append(('lds', f"ds_read_b64_tr_b16 {ar(aW(buf,t)+2,2)}, v{vWRD+t} offset:{off+1024}", f"qf{kap}"))
        return it
    stamp()
    a.wait(vm=["X0", "W0"])
    e("s_barrier")
    stamp()
    for it in q_reads(0): a.do(it)
    zero_list = [f"v_accvgpr_write_b32 a{i}, 0" for i in range(192)]
    zi = 0
    for kap in range(36):
        buf = kap & 1
        a.wait(lg=[f"qf{kap}"])
        mf = []
        for t in range(4):
            for j in range(3):
                T = 4*j + t
                acc = vr(vQACC + 16*T, 16)
                mf.append(f"{MF} {acc}, {ar(aW(buf,t),4)}, {ar(aX(buf,j),4)}, {acc if kap else 0}")
        gaps = [[] for _ in range(12)]
        dma = []
        if kap % 2 == 1:
            s = (kap + 1) // 2
            need = []
            if s <= 17: need.append(f"W{s}")
            if s % 2 == 0 and s // 2 <= 8: need.append(f"X{s//2}")
            if s == 18: need += ["K0"]
            gaps[0] += [('wait', need, None), "s_barrier"]
            if s % 2 == 0 and s >= 2 and s // 2 + 1 <= 8: dma += dmaX(s // 2 + 1)
            if s + 3 <= 17: dma += dmaW(s + 3)
            if s == 14: dma += dmaK(0) + dmaV(0) + dmaK(1)
            if s == 15: dma += dmaV(1)
            if s == 16: dma += dmaK(2)
            if s == 17: dma += dmaV(2)
            if s == 18: dma += dmaK(3)
        if kap + 1 < 36:
            rd = q_reads(kap + 1)
            g = spread(rd, 12, 1, 8)
            gaps = merge(gaps, g)
        if dma:
            g = spread(dma, 12, 1, 12)
            gaps = merge(gaps, g)
        nz = min(6, 192 - zi)
        if nz > 0 and kap >= 2:
            g = spread(zero_list[zi:zi+nz], 12, 6, 12); zi += nz
            gaps = merge(gaps, g)
        a.block(mf, gaps)
    assert zi == 192
    stamp()
    def k_read(i, c):
        return ('lds', f"ds_read_b128 {ar(aKF+4*c,4)}, v{vKRD+c} offset:{(i%4)*SLOT}", f"kf{i}")
    def v_reads(i, u, t):
        off = (i % 4)*SLOT + u*4096
        r = aVF + (u*4 + t)*4
        return [('lds', f"ds_read_b64_tr_b16 {ar(r,2)}, v{vVRD+t} offset:{off}", f"vf{i}"),
                ('lds', f"ds_read_b64_tr_b16 {ar(r+2,2)}, v{vVRD+t} offset:{off+2048}", f"vf{i}")]
    e("s_nop 7")
    for c in range(8): a.do(k_read(0, c))
    e("s_nop 7")
    for T in range(11, -1, -1):
        b0 = vQACC + 16*T
        for m in range(8):
            e(f"v_pk_mul_f32 v[{b0+2*m}:{b0+2*m+1}], v[{b0+2*m}:{b0+2*m+1}], s[{sSC}:{sSC+1}]")
        for m in range(7, -1, -1):
            e(f"v_cvt_pk_bf16_f32 v{vQF+8*T+m}, v{b0+2*m}, v{b0+2*m+1}")
    stamp()
    Qf = lambda j, c: vr(vQF + 32*j + 4*c, 4)
    def qk(n):
        i, j = divmod(n, 3)
        S = vr(vS[n & 1], 16)
        return [f"{MF} {S}, {ar(aKF+4*c,4)}, {Qf(j,c)}, {S if c else 0}" for c in range(8)]
    def pv(n):
        i, j = divmod(n, 3)
        r = []
        for u in range(2):
            for t in range(4):
                O = ar(aO + (j*4 + t)*16, 16)
                r.append(f"{MF} {O}, {ar(aVF+(u*4+t)*4,4)}, {vr(vP[n&1]+4*u,4)}, {O}")
        return r
    def sm(n):
        j = n % 3
        s = vS[n & 1]; P = vP[n & 1]; l = vL + j
        seq = []
        ex = lambda k: (f"v_exp_f32 v{s+k}, v{s+k}", 8)
        ad = lambda k: (f"v_add_f32 v{l}, v{l}, v{s+k}", 4)
        cv = lambda m: (f"v_cvt_pk_bf16_f32 v{P+m}, v{s+2*m}, v{s+2*m+1}", 4)
        for k in range(16):
            seq.append(ex(k))
            if k >= 1: seq.append(ad(k-1))
            if k >= 2 and k % 2 == 0: seq.append(cv((k-2)//2))
        seq += [ad(15), cv(7)]
        return seq
    def cost(item):
        if isinstance(item, list): return sum(cost(x) for x in item)
        return 4
    def fill(fixed, seq, ngaps):
        tot = sum(cost(g) for g in fixed) + sum(c for _, c in seq)
        per = tot / ngaps
        out = []; k = 0; cum = 0
        for gi in range(ngaps):
            g = list(fixed[gi]); cum += cost(fixed[gi])
            while k < len(seq) and (cum + seq[k][1] / 2 <= per * (gi + 1) or gi == ngaps - 1):
                g.append(seq[k][0]); cum += seq[k][1]; k += 1
            out.append(g)
        return out
    a.wait(lg=["kf0"])
    e("s_nop 1")
    for m in qk(0): e(m)
    e("s_nop 7"); e("s_nop 7")
    for n in range(48):
        i, j = divmod(n, 3)
        mf = (qk(n+1) if n + 1 < 48 else []) + (pv(n-1) if n >= 1 else [])
        nq = 8 if n + 1 < 48 else 0
        ng = len(mf)
        fixed = [[] for _ in range(ng)]
        pre = []
        if j == 0:
            need = [f"V{i}"] + ([f"K{i+1}"] if i + 1 <= 15 else [])
            fixed[0] += [('wait', need, None), "s_barrier"]
            for u in range(2):
                for t in range(4):
                    gi = (nq + u*4 + t) if n >= 1 else (u*4 + t) % ng
                    if n == 0 and gi == 0: gi = 1
                    fixed[min(gi, ng-1)] += v_reads(i, u, t)
        if j == 1:
            if i + 1 <= 15:
                for c in range(8): fixed[c] += [k_read(i+1, c)]
            if i + 4 <= 15:
                d = dmaK(i+4)
                for k, it in enumerate(d): fixed[9 + k] += [it]
        if j == 2 and i + 3 <= 15:
            d = dmaV(i+3)
            for k, it in enumerate(d): fixed[2 + 2*k] += [it]
        gaps = fill(fixed, sm(n), ng)
        for mi, m in enumerate(mf):
            if j == 2 and mi == 0 and nq: a.wait(lg=[f"kf{i+1}"])
            if j == 1 and mi == nq: a.wait(lg=[f"vf{i}"])
            a.do(m); a.do(gaps[mi])
        if n in (0, 23): stamp()
    stamp()
    e("s_nop 1")
    for m in pv(47): e(m)
    for j in range(3):
        l = vL + j
        e(f"v_mov_b32 v{vT}, v{l}")
        e("s_nop 1")
        e(f"v_permlane32_swap_b32 v{vT}, v{l}")
        e("s_nop 1")
        e(f"v_add_f32 v{l}, v{l}, v{vT}")
        e("s_nop 0")
        e(f"v_rcp_f32 v{vT+2+2*j}, v{l}")
        e("s_nop 0")
        e(f"v_mov_b32 v{vT+3+2*j}, v{vT+2+2*j}")
    e(f"v_lshlrev_b32 v{vT+8}, 4, v0")
    e("s_nop 7")
    tmp = [64, 96]
    k = 0
    for j in range(3):
        rinv = vT + 2 + 2*j
        for t in range(4):
            b0 = 64 + 32*(k & 1); pk = b0 + 16
            for r in range(16): e(f"v_accvgpr_read_b32 v{b0+r}, a{aO + (j*4+t)*16 + r}")
            for r in range(16): e(f"v_mul_f32 v{b0+r}, v{b0+r}, v{rinv}")
            for m in range(8): e(f"v_cvt_pk_bf16_f32 v{pk+m}, v{b0+2*m}, v{b0+2*m+1}")
            e(f"s_add_u32 s{sTMP}, s{sOO}, {j*262144 + (t>>1)*4096}")
            for hf in range(2):
                a.vmem(f"buffer_store_dwordx4 v[{pk+4*hf}:{pk+4*hf+3}], v{vT+8}, s[{sO}:{sO+3}], s{sTMP} offen offset:{((t&1)*2+hf)*1024} {oflags}", "O")
            k += 1
    if stamps:
        stamp()
        a.wait(vm="all")
        stamp()
        e(f"s_lshl_b32 s3, s2, 2")
        e(f"s_add_u32 s3, s3, s{sWV}")
        e("s_lshl_b32 s3, s3, 7")
        e(f"s_add_u32 s3, s3, {32*1024*1024}")
        e(f"s_mov_b32 s{sO+2}, 268435456")
        for k in range(32):
            e(f"v_mov_b32 v{64+k}, s{sSTAMP+k}")
        e(f"v_mov_b32 v{vT}, 0")
        e("v_cmp_eq_u32 vcc, 0, v0")
        e("s_and_saveexec_b64 s[6:7], vcc")
        e(f"s_cbranch_execz L_end_{name}")
        for k in range(8):
            e(f"buffer_store_dwordx4 v[{64+4*k}:{67+4*k}], v{vT}, s[{sO}:{sO+3}], s3 offen offset:{16*k}")
    e("s_waitcnt vmcnt(0)")
    e(f"L_end_{name}:")
    e("s_endpgm")
    e(f"{end_label}:")

def gen(path, **kw):
    a = Asm()
    header(a.L, ["; @launch grid=(256,1,1) block=(256,1,1) lds=163840"])
    gen_k1(a, K, **kw)
    kdesc(a.L, K, vgpr=256, agpr=256, sgpr=100)
    open(path, "w").write(a.text())
    return a
if __name__ == "__main__":
    a = gen("k1.s", stamps=True)
    print(len(a.L), "lines")
```

```python
from asmlib import *
MF = "v_mfma_f32_32x32x16_bf16"
NST = 32
RING = 6
LEADW = 6
OD = 24
STG = 16384

def gen_k2(a, name, stamps=False, prefetch_code=True, end_label="L_k2_code_end", oflags="", wflags="", ring=RING, leadw=LEADW, od=OD):
    e = a.e
    sW, sO, sOUT = 8, 12, 16
    sMB, sWS, sOS, sOUTS, sWV, sBR, sNB, sQT = 20, 21, 22, 23, 24, 25, 26, 27
    sTMP = 28
    vLANE16, vWD, vARD, vT = 1, 2, 6, 10
    vB = 32
    vA = vB + 4*od
    vACC = vA + 16
    assert vACC + 32 <= 256
    nstamp = [0]
    def stamp():
        if not stamps: return
        k = nstamp[0]; nstamp[0] += 1
        a.wait(lg="all")
        e("s_memtime s[96:97]"); e("s_memrealtime s[98:99]"); e("s_waitcnt lgkmcnt(0)")
        e(f"s_mov_b32 s{64+k}, s96"); e(f"s_mov_b32 s{80+k}, s98")
    kstart(a.L, name)
    e("s_cmp_ge_u32 s2, 216")
    e(f"s_cbranch_scc1 L_end_{name}")
    e("s_load_dwordx2 s[48:49], s[0:1], 32")
    e("s_load_dwordx2 s[50:51], s[0:1], 72")
    e("s_load_dwordx2 s[52:53], s[0:1], 80")
    e("s_load_dwordx2 s[54:55], s[0:1], 96")
    if stamps:
        e("s_memrealtime s[98:99]"); e("s_waitcnt lgkmcnt(0)"); e("s_mov_b32 s95, s98")
    e(f"v_lshrrev_b32 v{vT}, 6, v0")
    e("v_and_b32 v0, 63, v0")
    e(f"v_readfirstlane_b32 s{sWV}, v{vT}")
    e("s_and_b32 s3, s2, 7")
    e(f"s_lshr_b32 s{sBR}, s3, 2")
    e("s_and_b32 s3, s3, 3")
    e("s_lshr_b32 s6, s2, 3")
    e("s_mul_i32 s7, s6, 7282")
    e("s_lshr_b32 s7, s7, 16")
    e("s_mul_i32 s4, s7, 9")
    e(f"s_sub_u32 s{sNB}, s6, s4")
    e("s_mul_i32 s3, s3, 3")
    e("s_add_u32 s3, s3, s7")
    e("s_lshl_b32 s3, s3, 2")
    e(f"s_add_u32 s{sQT}, s3, s{sWV}")
    e(f"s_mul_i32 s{sOS}, s{sBR}, 48")
    e(f"s_add_u32 s{sOS}, s{sOS}, s{sQT}")
    e(f"s_lshl_b32 s{sOS}, s{sOS}, 18")
    e(f"s_mul_i32 s{sWS}, s{sWV}, {32*1152}")
    e(f"s_lshl_b32 s4, s{sNB}, 7")
    e(f"s_add_u32 s{sWS}, s{sWS}, s4")
    e(f"s_lshl_b32 s{sMB}, s{sWV}, 12")
    e(f"s_mul_i32 s{sOUTS}, s{sQT}, {32*2304}")
    e(f"s_mul_i32 s5, s{sBR}, 1152")
    e(f"s_add_u32 s{sOUTS}, s{sOUTS}, s5")
    e(f"s_add_u32 s{sOUTS}, s{sOUTS}, s4")
    t0, t1, t2, t3 = vT, vT+1, vT+2, vT+3
    e(f"v_lshlrev_b32 v{vLANE16}, 4, v0")
    e(f"v_lshrrev_b32 v{t0}, 3, v0")
    e(f"v_mul_u32_u24 v{t0}, 1152, v{t0}")
    e(f"v_lshrrev_b32 v{t1}, 4, v0")
    e(f"v_and_b32 v{t1}, 1, v{t1}")
    e(f"v_lshlrev_b32 v{t1}, 2, v{t1}")
    e(f"v_and_b32 v{t2}, 7, v0")
    e(f"v_xor_b32 v{t1}, v{t1}, v{t2}")
    e(f"v_lshlrev_b32 v{t1}, 4, v{t1}")
    e(f"v_add_u32 v{t0}, v{t0}, v{t1}")
    for mm in range(4):
        e(f"v_add_u32 v{vWD+mm}, {mm*(9216-1024)}, v{t0}")
    e("s_waitcnt lgkmcnt(0)")
    e(f"s_cmp_eq_u32 s{sBR}, 0")
    e(f"s_cselect_b32 s{sW}, s48, s50"); e(f"s_cselect_b32 s{sW+1}, s49, s51")
    e(f"s_mov_b32 s{sW+2}, 4718592"); e(f"s_mov_b32 s{sW+3}, 0x20000")
    e(f"s_mov_b32 s{sO}, s54"); e(f"s_mov_b32 s{sO+1}, s55"); e(f"s_mov_b32 s{sO+2}, 25165824"); e(f"s_mov_b32 s{sO+3}, 0x20000")
    e(f"s_mov_b32 s{sOUT}, s52"); e(f"s_mov_b32 s{sOUT+1}, s53"); e(f"s_mov_b32 s{sOUT+2}, 3538944"); e(f"s_mov_b32 s{sOUT+3}, 0x20000")
    def dmaW(s):
        it = [[f"s_add_u32 m0, s{sMB}, {(s % ring)*STG}", f"s_add_u32 s{sTMP}, s{sWS}, {s*128*1152}"]]
        for mm in range(4):
            it.append(('vm', f"buffer_load_dwordx4 v{vWD+mm}, s[{sW}:{sW+3}], s{sTMP} offen offset:{mm*1024} {wflags} lds", f"W{s}"))
        return it
    def ldO(kk):
        it = []
        if kk % 4 == 0: it.append(f"s_add_u32 s{sTMP+1}, s{sOS}, {kk*1024}")
        r = vB + 4*(kk % od)
        it.append(('vm', f"buffer_load_dwordx4 v[{r}:{r+3}], v{vLANE16}, s[{sO}:{sO+3}], s{sTMP+1} offen offset:{(kk%4)*1024} {oflags}", f"O{kk}"))
        return it
    a.do(dmaW(0))
    for kk in range(8): a.do(ldO(kk))
    for s in range(1, leadw): a.do(dmaW(s))
    for kk in range(8, od - 1): a.do(ldO(kk))
    if prefetch_code:
        e("s_getpc_b64 s[6:7]")
        e("L_pf_base2:")
        e(f"v_lshlrev_b32 v{t0}, 7, v0")
        e(f"s_lshl_b32 s3, s{sWV}, 13")
        e(f"v_add_u32 v{t0}, s3, v{t0}")
        e(f"v_min_u32 v{t1}, {end_label}-L_pf_base2, v{t0}")
        a.vmem(f"global_load_dword v31, v{t1}, s[6:7]", "PF")
    hh, r_, c_, dh = t0, t1, t2, t3
    e(f"v_lshrrev_b32 v{hh}, 5, v0")
    e(f"v_and_b32 v{r_}, 15, v0"); e(f"v_lshrrev_b32 v{r_}, 2, v{r_}")
    e(f"v_and_b32 v{c_}, 3, v0")
    e(f"v_lshrrev_b32 v{dh}, 4, v0"); e(f"v_and_b32 v{dh}, 1, v{dh}")
    x0, x1 = vT+4, vT+5
    e(f"v_lshlrev_b32 v{x0}, 3, v{hh}"); e(f"v_add_u32 v{x0}, v{x0}, v{r_}"); e(f"v_lshlrev_b32 v{x0}, 7, v{x0}")
    e(f"v_lshrrev_b32 v{x1}, 1, v{r_}"); e(f"v_lshlrev_b32 v{x1}, 6, v{x1}"); e(f"v_add_u32 v{x0}, v{x0}, v{x1}")
    e(f"v_lshlrev_b32 v{x1}, 5, v{dh}"); e(f"v_add_u32 v{x0}, v{x0}, v{x1}")
    e(f"v_and_b32 v{x1}, 1, v{c_}"); e(f"v_lshlrev_b32 v{x1}, 4, v{x1}"); e(f"v_add_u32 v{x0}, v{x0}, v{x1}")
    e(f"v_lshrrev_b32 v{x1}, 1, v{c_}"); e(f"v_lshlrev_b32 v{x1}, 3, v{x1}"); e(f"v_add_u32 v{x0}, v{x0}, v{x1}")
    nb_regs = (ring*STG + 65535) // 65536
    vARD2 = vT + 6
    for hb in range(nb_regs):
        for t in range(2):
            e(f"v_xor_b32 v{vARD2+2*hb+t}, {64*t}, v{x0}")
            if hb: e(f"v_add_u32 v{vARD2+2*hb+t}, {hb*65536}, v{vARD2+2*hb+t}")
    vOUT = vARD
    e(f"v_and_b32 v{x1}, 31, v0"); e(f"v_mul_u32_u24 v{vOUT}, 2304, v{x1}")
    e(f"v_lshlrev_b32 v{x1}, 4, v{hh}"); e(f"v_add_u32 v{vOUT}, v{vOUT}, v{x1}")
    def a_reads(kk):
        s, ks = divmod(kk, 8)
        base = (s % ring)*STG + ks*2048
        hb, off = divmod(base, 65536)
        it = []
        for t in range(2):
            r = vA + 8*(kk & 1) + 4*t
            it.append(('lds', f"ds_read_b64_tr_b16 v[{r}:{r+1}], v{vARD2+2*hb+t} offset:{off}", f"A{kk}"))
            it.append(('lds', f"ds_read_b64_tr_b16 v[{r+2}:{r+3}], v{vARD2+2*hb+t} offset:{off+512}", f"A{kk}"))
        return it
    stamp()
    a.wait(vm=["W0"]); e("s_barrier")
    stamp()
    a.do(a_reads(0))
    NK = NST*8
    for kk in range(NK):
        s, ks = divmod(kk, 8)
        nxt = []
        if ks == 7 and s + 1 < NST:
            nxt += [('wait', [f"W{s+1}"], None), "s_barrier"]
        a.wait(vm=[f"O{kk}"], lg=[f"A{kk}"])
        mf = []
        for t in range(2):
            acc = vr(vACC + 16*t, 16)
            mf.append(f"{MF} {acc}, {vr(vA+8*(kk&1)+4*t,4)}, {vr(vB+4*(kk%od),4)}, {acc if kk else 0}")
        g0 = nxt + (a_reads(kk+1) if kk + 1 < NK else [])
        g1 = []
        if kk + od - 1 < NK: g1 += ldO(kk + od - 1)
        if ks == 0 and s >= 1 and s - 1 + leadw < NST: g1 += dmaW(s - 1 + leadw)
        a.block(mf, [g0, g1])
        if kk == 127: stamp()
    stamp()
    e("s_nop 7"); e("s_nop 7")
    pk = vB
    for t in range(2):
        for m in range(8):
            e(f"v_cvt_pk_bf16_f32 v{pk+8*t+m}, v{vACC+16*t+2*m}, v{vACC+16*t+2*m+1}")
    for t in range(2):
        for hf in range(2):
            a.vmem(f"buffer_store_dwordx4 v[{pk+8*t+4*hf}:{pk+8*t+4*hf+3}], v{vOUT}, s[{sOUT}:{sOUT+3}], s{sOUTS} offen offset:{64*t+32*hf}", "OUT")
    if stamps:
        a.wait(vm="all")
        stamp()
        e("s_lshl_b32 s3, s2, 2"); e(f"s_add_u32 s3, s3, s{sWV}"); e("s_lshl_b32 s3, s3, 7"); e(f"s_add_u32 s3, s3, {33*1024*1024}")
        e(f"s_mov_b32 s{sO+2}, 268435456")
        for k in range(32): e(f"v_mov_b32 v{64+k}, s{64+k}")
        e(f"v_mov_b32 v{vT}, 0")
        e("v_cmp_eq_u32 vcc, 0, v0"); e("s_and_saveexec_b64 s[6:7], vcc"); e(f"s_cbranch_execz L_end_{name}")
        for k in range(8):
            e(f"buffer_store_dwordx4 v[{64+4*k}:{67+4*k}], v{vT}, s[{sO}:{sO+3}], s3 offen offset:{16*k}")
    e("s_waitcnt vmcnt(0)")
    e(f"L_end_{name}:")
    e("s_endpgm")
    e(f"{end_label}:")
```

```python
import sys
from asmlib import *
import gen_k1, gen_k2
HDR = open('concat_heads__mha_block_cached__mha_block_cached__near_ridge.s.ref').read().split("; Override")[0]
def gen(path, k1kw={}, k2kw={}):
    a = Asm()
    a.L += HDR.rstrip("\n").split("\n")
    header(a.L, ["; @launch kernel=attn_kernel grid=(256,1,1) block=(256,1,1) lds=163840",
                 f"; @launch kernel=oproj_kernel grid=(216,1,1) block=(256,1,1) lds={gen_k2.RING*gen_k2.STG}"])
    gen_k1.gen_k1(a, "attn_kernel", **k1kw)
    b = Asm()
    gen_k2.gen_k2(b, "oproj_kernel", **k2kw)
    a.L += b.L
    kdesc(a.L, "attn_kernel", vgpr=256, agpr=256, sgpr=100)
    kdesc(a.L, "oproj_kernel", vgpr=256, agpr=0, sgpr=100)
    open(path, "w").write(a.text())
    return a
if __name__ == "__main__":
    a = gen(sys.argv[1] if len(sys.argv) > 1 else "all.s")
    print(len(a.L), "lines")
```

```python
from asmlib import *

SLOT = 8192
WOFF = [49152, 24576, 40960, 16384]
X0 = 139264
X1P = [57344, 122880, 131072]
X0P = [X0, X0 + 8192, X0 + 16384]
CSCALE = 1.4426950408889634 * (128 ** -0.5)
import struct
def f2u(x): return struct.unpack("<I", struct.pack("<f", x))[0]

vKRD, vVRD, vKDMA, vVDMA, vL = 1, 9, 13, 17, 18
vWRD, vWDMA, vXDMA, vX0RD, vX1RD = 21, 25, 29, 31, 35
vT = 47
vDUMMY = 63
vQACC = 64
vS = [64, 80]; vP = [96, 104]; vNEGM = 112; vQF = 160
aO = 0; aKF = 192; aVF = 224
sK, sV, sX, sW, sO = 8, 12, 16, 20, 24
sMB, sKV, sXO, sWO, sXM, sWV, sHS, sRH, sBR, sB, sH = 28, 29, 32, 33, 34, 35, 36, 37, 38, 39, 40
sSC = 42
sTMP = 44
sOO = 30
sSTAMP = 64

MF = "v_mfma_f32_32x32x16_bf16"
STAMP_SLOTS = (0, 5, 11, 17, 23, 29, 35, 41)

def gen_k1(a, name, kvflags="nt", stamps=False, oflags="sc1", prefetch_code=True, end_label="L_k1_code_end", samekv=False, xflags="", wflags="", rotq=True, rotkv=(1,0), wnt0=2, xnt0=0, rotmul=1):
    e = a.e
    nstamp = [0]
    def stamp():
        if not stamps: return
        k = nstamp[0]; nstamp[0] += 1
        a.wait(lg="all")
        e(f"s_memtime s[96:97]")
        e(f"s_memrealtime s[98:99]")
        e("s_waitcnt lgkmcnt(0)")
        e(f"s_mov_b32 s{sSTAMP+k}, s96")
        e(f"s_mov_b32 s{sSTAMP+16+k}, s98")
    kstart(a.L, name)
    e("s_cmp_ge_u32 s2, 256")
    e(f"s_cbranch_scc1 L_end_{name}")
    e("s_load_dwordx8 s[48:55], s[0:1], 0")
    e("s_load_dwordx8 s[56:63], s[0:1], 40")
    e("s_load_dwordx2 s[4:5], s[0:1], 96")
    if stamps:
        e("s_memrealtime s[98:99]")
        e("s_waitcnt lgkmcnt(0)")
        e("s_mov_b32 s95, s98")
    e(f"v_lshrrev_b32 v{vT}, 6, v0")
    e("v_and_b32 v0, 63, v0")
    e(f"v_readfirstlane_b32 s{sWV}, v{vT}")
    e("s_and_b32 s3, s2, 7")
    e(f"s_lshr_b32 s{sBR}, s3, 2")
    e("s_and_b32 s3, s3, 3")
    e("s_lshr_b32 s6, s2, 3")
    e(f"s_and_b32 s{sB}, s6, 7")
    e("s_lshr_b32 s6, s6, 3")
    e("s_lshl_b32 s3, s3, 2")
    e("s_add_u32 s3, s3, s6")
    e(f"s_lshr_b32 s{sHS}, s{sWV}, 1")
    e(f"s_and_b32 s{sRH}, s{sWV}, 1")
    e("s_lshl_b32 s3, s3, 1")
    e(f"s_add_u32 s{sH}, s3, s{sHS}")
    e(f"s_lshl_b32 s6, s{sHS}, 16")
    e(f"s_lshl_b32 s7, s{sRH}, 12")
    e(f"s_add_u32 s{sMB}, s6, s7")
    e(f"s_lshl_b32 s{sKV}, s{sB}, 5")
    e(f"s_add_u32 s{sKV}, s{sKV}, s{sH}")
    e(f"s_lshl_b32 s{sKV}, s{sKV}, 17")
    if samekv: e(f"s_lshl_b32 s{sKV}, s{sHS}, 17")
    e(f"s_mul_i32 s{sXO}, s{sB}, 221184")
    e(f"s_lshl_b32 s{sWO}, s{sH}, 8")
    e(f"s_lshl_b32 s{sXM}, s{sWV}, 11")
    e(f"s_lshl_b32 s{sOO}, s{sBR}, 3")
    e(f"s_add_u32 s{sOO}, s{sOO}, s{sB}")
    e(f"s_mul_i32 s{sOO}, s{sOO}, 6")
    e(f"s_mul_i32 s{sTMP}, s{sRH}, 3")
    e(f"s_add_u32 s{sOO}, s{sOO}, s{sTMP}")
    e(f"s_lshl_b32 s{sOO}, s{sOO}, 18")
    e(f"s_lshl_b32 s{sTMP}, s{sH}, 13")
    e(f"s_add_u32 s{sOO}, s{sOO}, s{sTMP}")
    e(f"s_mov_b32 s{sSC}, {f2u(CSCALE):#x}")
    e(f"s_mov_b32 s{sSC+1}, {f2u(CSCALE):#x}")
    q, hh, q15, row4, t0, t1, t2, t3 = [vT + i for i in range(8)]
    e(f"v_and_b32 v{q}, 31, v0")
    e(f"v_lshrrev_b32 v{hh}, 5, v0")
    e(f"v_and_b32 v{q15}, 15, v0")
    e(f"v_lshrrev_b32 v{row4}, 4, v0")
    e(f"v_lshrrev_b32 v{t0}, 3, v0")
    e(f"s_lshl_b32 s7, s{sWV}, 4")
    e(f"v_add_u32 v{t0}, s7, v{t0}")
    e(f"v_mul_u32_u24 v{t0}, 1152, v{t0}")
    e(f"v_and_b32 v{t1}, 7, v0")
    for ee in range(2):
        e(f"v_add_u32 v{t2}, {4*ee}, v{row4}")
        e(f"v_xor_b32 v{t2}, v{t1}, v{t2}")
        e(f"v_lshlrev_b32 v{t2}, 4, v{t2}")
        e(f"v_add_u32 v{t2}, v{t0}, v{t2}")
        e(f"v_add_u32 v{vXDMA+ee}, {ee*(8*1152-1024)}, v{t2}")
    e(f"s_lshl_b32 s7, s{sRH}, 4")
    e(f"v_add_u32 v{t0}, s7, v{row4}")
    e(f"v_lshlrev_b32 v{t1}, 2, v{row4}")
    e(f"v_xor_b32 v{t1}, v{q15}, v{t1}")
    e(f"v_lshlrev_b32 v{t1}, 4, v{t1}")
    e(f"v_lshlrev_b32 v{t2}, 13, v{t0}")
    e(f"v_add_u32 v{t2}, v{t2}, v{t1}")
    for m in range(4):
        e(f"v_add_u32 v{vWDMA+m}, {m*(32768-1024)}, v{t2}")
    e(f"v_lshlrev_b32 v{t2}, 8, v{t0}")
    e(f"v_add_u32 v{vVDMA}, v{t2}, v{t1}")
    for m in range(4):
        e(f"v_add_u32 v{t3}, {4*m}, v{row4}")
        e(f"v_xor_b32 v{t3}, v{q15}, v{t3}")
        e(f"v_lshlrev_b32 v{t3}, 4, v{t3}")
        e(f"v_add_u32 v{vKDMA+m}, v{t2}, v{t3}")
    e("s_waitcnt lgkmcnt(0)")
    e(f"s_cmp_eq_u32 s{sBR}, 0")
    for (dst, off, size) in ((sX, 0, 1769472), (sK, 2, 33554432), (sV, 4, 33554432), (sW, 6, 4718592)):
        e(f"s_cselect_b32 s{dst}, s{48+off}, s{56+off}")
        e(f"s_cselect_b32 s{dst+1}, s{49+off}, s{57+off}")
        e(f"s_mov_b32 s{dst+2}, {size}")
        e(f"s_mov_b32 s{dst+3}, 0x20000")
    e(f"s_mov_b32 s{sO}, s4")
    e(f"s_mov_b32 s{sO+1}, s5")
    e(f"s_mov_b32 s{sO+2}, 25165824")
    e(f"s_mov_b32 s{sO+3}, 0x20000")

    sXcur, sXlim, sXbase, sWcur, sWlim, sWbase, sKr, sVr = 48, 49, 50, 51, 52, 53, 54, 55
    e(f"s_lshr_b32 s6, s2, 3")
    if rotq:
        e(f"s_lshr_b32 s7, s6, 3")
        e(f"s_mul_i32 s7, s7, {rotmul}")
        e(f"s_add_u32 s7, s7, s{sB}")
        e(f"s_cmp_ge_u32 s7, 9")
        e(f"s_cselect_b32 s3, 9, 0")
        e(f"s_sub_u32 s7, s7, s3")
    else:
        e("s_mov_b32 s7, 0")
    e(f"s_mov_b32 s{sXbase}, s{sXO}")
    e(f"s_add_u32 s{sXlim}, s{sXO}, 1152")
    e(f"s_lshl_b32 s3, s7, 7")
    e(f"s_add_u32 s{sXcur}, s{sXO}, s3")
    e(f"s_mov_b32 s{sWbase}, s{sWO}")
    e(f"s_add_u32 s{sWlim}, s{sWO}, {18*262144}")
    e(f"s_lshl_b32 s3, s7, 19")
    e(f"s_add_u32 s{sWcur}, s{sWO}, s3")
    if rotkv:
        e(f"s_mul_i32 s3, s6, {rotkv[0]}")
        e(f"s_mul_i32 s7, s{sHS}, {rotkv[1]}")
        e(f"s_add_u32 s3, s3, s7")
        e(f"s_and_b32 s3, s3, 15")
        e(f"s_lshl_b32 s{sKr}, s3, 13")
    else:
        e(f"s_mov_b32 s{sKr}, 0")
    e(f"s_mov_b32 s{sVr}, s{sKr}")
    def dmaX(c):
        items = []
        P = X0P if c % 2 == 0 else X1P
        fl = "nt" if c < xnt0 else xflags
        for p in range(3):
            items.append([f"s_add_u32 m0, s{sXM}, {P[p]}", f"s_add_u32 s{sTMP}, s{sXcur}, {p*73728}"])
            for ee in range(2):
                items.append(('vm', f"buffer_load_dwordx4 v{vXDMA+ee}, s[{sX}:{sX+3}], s{sTMP} offen offset:{ee*1024} {fl} lds", f"X{c}"))
        items.append([f"s_add_u32 s{sXcur}, s{sXcur}, 128", f"s_cmp_eq_u32 s{sXcur}, s{sXlim}", f"s_cselect_b32 s{sXcur}, s{sXbase}, s{sXcur}"])
        return items
    def dmaW(s):
        fl = "nt" if s < wnt0 else wflags
        items = [[f"s_add_u32 m0, s{sMB}, {WOFF[s%4]}", f"s_mov_b32 s{sTMP+1}, s{sWcur}"]]
        for m in range(4):
            items.append(('vm', f"buffer_load_dwordx4 v{vWDMA+m}, s[{sW}:{sW+3}], s{sTMP+1} offen offset:{m*1024} {fl} lds", f"W{s}"))
        items.append([f"s_add_u32 s{sWcur}, s{sWcur}, 262144", f"s_cmp_eq_u32 s{sWcur}, s{sWlim}", f"s_cselect_b32 s{sWcur}, s{sWbase}, s{sWcur}"])
        return items
    def dmaK(i):
        items = [[f"s_add_u32 m0, s{sMB}, {(i%4)*SLOT}", f"s_add_u32 s{sTMP+2}, s{sKV}, s{sKr}"]]
        for m in range(4):
            items.append(('vm', f"buffer_load_dwordx4 v{vKDMA+m}, s[{sK}:{sK+3}], s{sTMP+2} offen offset:{m*1024} {kvflags} lds", f"K{i}"))
        items.append([f"s_add_u32 s{sKr}, s{sKr}, 8192", f"s_and_b32 s{sKr}, s{sKr}, 0x1ffff"])
        return items
    def dmaV(i):
        items = [[f"s_add_u32 m0, s{sMB}, {32768 + (i%4)*SLOT}", f"s_add_u32 s{sTMP+3}, s{sKV}, s{sVr}"]]
        for m in range(4):
            items.append(('vm', f"buffer_load_dwordx4 v{vVDMA}, s[{sV}:{sV+3}], s{sTMP+3} offen offset:{m*1024} {kvflags} lds", f"V{i}"))
        items.append([f"s_add_u32 s{sVr}, s{sVr}, 8192", f"s_and_b32 s{sVr}, s{sVr}, 0x1ffff"])
        return items

    for it in dmaX(0) + dmaW(0) + dmaW(1) + dmaX(1) + dmaW(2) + dmaW(3): a.do(it)
    if prefetch_code:
        e("s_getpc_b64 s[6:7]")
        e(f"v_lshlrev_b32 v{t0}, 7, v0")
        e(f"s_lshl_b32 s3, s{sWV}, 13")
        e(f"v_add_u32 v{t0}, s3, v{t0}")
        for k in range(2):
            e(f"v_add_u32 v{t1}, {k*32768}, v{t0}")
            e(f"v_min_u32 v{t1}, {end_label}-L_pf_base, v{t1}")
            a.vmem(f"global_load_dword v{vDUMMY}, v{t1}, s[6:7]", "PF")
        a.L.insert(a.L.index("s_getpc_b64 s[6:7]") + 1, "L_pf_base:")

    e(f"s_lshl_b32 s6, s{sHS}, 16")
    e(f"v_xor_b32 v{t0}, v{hh}, v{q15}")
    e(f"v_lshlrev_b32 v{t0}, 4, v{t0}")
    e(f"v_lshlrev_b32 v{t1}, 8, v{q}")
    e(f"v_add3_u32 v{t0}, v{t0}, v{t1}, s6")
    for c in range(8):
        e(f"v_xor_b32 v{vKRD+c}, {32*c}, v{t0}")
    r_, c_ = t1, t2
    e(f"v_lshrrev_b32 v{r_}, 2, v{q15}")
    e(f"v_and_b32 v{c_}, 3, v0")
    e(f"v_and_b32 v{t3}, 1, v{c_}")
    e(f"v_lshlrev_b32 v{t3}, 4, v{t3}")
    e(f"v_lshrrev_b32 v{c_}, 1, v{c_}")
    e(f"v_lshlrev_b32 v{c_}, 3, v{c_}")
    e(f"v_or_b32 v{t3}, v{t3}, v{c_}")
    e(f"v_and_b32 v{c_}, 1, v{row4}")
    e(f"v_lshlrev_b32 v{c_}, 5, v{c_}")
    e(f"v_or_b32 v{t3}, v{t3}, v{c_}")
    e(f"v_lshlrev_b32 v{c_}, 6, v{r_}")
    e(f"v_or_b32 v{t3}, v{t3}, v{c_}")
    e(f"v_add_u32 v{t3}, s6, v{t3}")
    e(f"v_lshlrev_b32 v{c_}, 2, v{hh}")
    e(f"v_add_u32 v{c_}, v{c_}, v{r_}")
    e(f"v_lshlrev_b32 v{c_}, 8, v{c_}")
    e(f"v_add_u32 v{c_}, v{c_}, v{t3}")
    e(f"v_add_u32 v{c_}, 32768, v{c_}")
    for t in range(4):
        e(f"v_xor_b32 v{vVRD+t}, {64*t}, v{c_}")
    e(f"v_lshlrev_b32 v{c_}, 3, v{hh}")
    e(f"v_add_u32 v{c_}, v{c_}, v{r_}")
    e(f"v_lshlrev_b32 v{c_}, 8, v{c_}")
    e(f"v_add_u32 v{c_}, v{c_}, v{t3}")
    for t in range(4):
        e(f"v_xor_b32 v{vWRD+t}, {64*t}, v{c_}")
    e(f"v_lshrrev_b32 v{t0}, 1, v{q}")
    e(f"v_and_b32 v{t0}, 7, v{t0}")
    e(f"v_xor_b32 v{t0}, v{hh}, v{t0}")
    e(f"v_lshlrev_b32 v{t0}, 4, v{t0}")
    e(f"v_lshlrev_b32 v{t1}, 7, v{q}")
    e(f"v_add_u32 v{t0}, v{t0}, v{t1}")
    e(f"s_mul_i32 s3, s{sRH}, 12288")
    e(f"s_add_u32 s3, s3, {X0}")
    e(f"v_add_u32 v{t1}, s3, v{t0}")
    for ks in range(4):
        e(f"v_xor_b32 v{vX0RD+ks}, {32*ks}, v{t1}")
    x1 = lambda T: X1P[T >> 1] + (T & 1) * 4096
    e(f"s_cmp_eq_u32 s{sRH}, 0")
    for j in range(3):
        e(f"s_mov_b32 s6, {x1(j)}")
        e(f"s_mov_b32 s7, {x1(3+j)}")
        e(f"s_cselect_b32 s3, s6, s7")
        e(f"v_add_u32 v{t1}, s3, v{t0}")
        for ks in range(4):
            e(f"v_xor_b32 v{vX1RD+4*j+ks}, {32*ks}, v{t1}")
    for j in range(3):
        e(f"v_mov_b32 v{vL+j}, 0")

    aW = lambda buf, t: 192 + 16*buf + 4*t
    aX = lambda buf, j: 224 + 12*buf + 4*j
    def q_reads(kap):
        s = kap >> 1; ks2 = kap & 1; c = kap >> 2; ks = kap & 3; buf = kap & 1
        it = []
        for j in range(3):
            if c % 2 == 0:
                it.append(('lds', f"ds_read_b128 {ar(aX(buf,j),4)}, v{vX0RD+ks} offset:{j*4096}", f"qf{kap}"))
            else:
                it.append(('lds', f"ds_read_b128 {ar(aX(buf,j),4)}, v{vX1RD+4*j+ks}", f"qf{kap}"))
        for t in range(4):
            off = WOFF[s % 4] + ks2*4096
            it.append(('lds', f"ds_read_b64_tr_b16 {ar(aW(buf,t),2)}, v{vWRD+t} offset:{off}", f"qf{kap}"))
            it.append(('lds', f"ds_read_b64_tr_b16 {ar(aW(buf,t)+2,2)}, v{vWRD+t} offset:{off+1024}", f"qf{kap}"))
        return it
    stamp()
    a.wait(vm=["X0", "W0"])
    e("s_barrier")
    stamp()
    for it in q_reads(0): a.do(it)
    zero_list = [f"v_accvgpr_write_b32 a{i}, 0" for i in range(192)]
    zi = 0
    for kap in range(36):
        buf = kap & 1
        a.wait(lg=[f"qf{kap}"])
        mf = []
        for t in range(4):
            for j in range(3):
                T = 4*j + t
                acc = vr(vQACC + 16*T, 16)
                mf.append(f"{MF} {acc}, {ar(aW(buf,t),4)}, {ar(aX(buf,j),4)}, {acc if kap else 0}")
        gaps = [[] for _ in range(12)]
        dma = []
        if kap % 2 == 1:
            s = (kap + 1) // 2
            need = []
            if s <= 17: need.append(f"W{s}")
            if s % 2 == 0 and s // 2 <= 8: need.append(f"X{s//2}")
            if s == 18: need += ["K0"]
            gaps[0] += [('wait', need, None), "s_barrier"]
            if s % 2 == 0 and s >= 2 and s // 2 + 1 <= 8: dma += dmaX(s // 2 + 1)
            if s + 3 <= 17: dma += dmaW(s + 3)
            if s == 14: dma += dmaK(0) + dmaV(0) + dmaK(1)
            if s == 15: dma += dmaV(1)
            if s == 16: dma += dmaK(2)
            if s == 17: dma += dmaV(2)
            if s == 18: dma += dmaK(3)
        if kap + 1 < 36:
            rd = q_reads(kap + 1)
            g = spread(rd, 12, 1, 8)
            gaps = merge(gaps, g)
        if dma:
            g = spread(dma, 12, 1, 12)
            gaps = merge(gaps, g)
        nz = min(6, 192 - zi)
        if nz > 0 and kap >= 2:
            g = spread(zero_list[zi:zi+nz], 12, 6, 12); zi += nz
            gaps = merge(gaps, g)
        a.block(mf, gaps)
    assert zi == 192
    stamp()
    def k_read(i, c):
        return ('lds', f"ds_read_b128 {ar(aKF+4*c,4)}, v{vKRD+c} offset:{(i%4)*SLOT}", f"kf{i}")
    def v_reads(i, u, t):
        off = (i % 4)*SLOT + u*4096
        r = aVF + (u*4 + t)*4
        return [('lds', f"ds_read_b64_tr_b16 {ar(r,2)}, v{vVRD+t} offset:{off}", f"vf{i}"),
                ('lds', f"ds_read_b64_tr_b16 {ar(r+2,2)}, v{vVRD+t} offset:{off+2048}", f"vf{i}")]
    e("s_nop 7")
    for c in range(8): a.do(k_read(0, c))
    e("s_nop 7")
    for T in range(11, -1, -1):
        b0 = vQACC + 16*T
        for m in range(8):
            e(f"v_pk_mul_f32 v[{b0+2*m}:{b0+2*m+1}], v[{b0+2*m}:{b0+2*m+1}], s[{sSC}:{sSC+1}]")
        for m in range(7, -1, -1):
            e(f"v_cvt_pk_bf16_f32 v{vQF+8*T+m}, v{b0+2*m}, v{b0+2*m+1}")
    stamp()
    Qf = lambda j, c: vr(vQF + 32*j + 4*c, 4)
    def qk(n):
        i, j = divmod(n, 3)
        S = vr(vS[n & 1], 16)
        return [f"{MF} {S}, {ar(aKF+4*c,4)}, {Qf(j,c)}, {S if c else 0}" for c in range(8)]
    def pv(n):
        i, j = divmod(n, 3)
        r = []
        for u in range(2):
            for t in range(4):
                O = ar(aO + (j*4 + t)*16, 16)
                r.append(f"{MF} {O}, {ar(aVF+(u*4+t)*4,4)}, {vr(vP[n&1]+4*u,4)}, {O}")
        return r
    def sm(n):
        j = n % 3
        s = vS[n & 1]; P = vP[n & 1]; l = vL + j
        seq = []
        ex = lambda k: (f"v_exp_f32 v{s+k}, v{s+k}", 8)
        ad = lambda k: (f"v_add_f32 v{l}, v{l}, v{s+k}", 4)
        cv = lambda m: (f"v_cvt_pk_bf16_f32 v{P+m}, v{s+2*m}, v{s+2*m+1}", 4)
        for k in range(16):
            seq.append(ex(k))
            if k >= 1: seq.append(ad(k-1))
            if k >= 2 and k % 2 == 0: seq.append(cv((k-2)//2))
        seq += [ad(15), cv(7)]
        return seq
    def cost(item):
        if isinstance(item, list): return sum(cost(x) for x in item)
        return 4
    def fill(fixed, seq, ngaps):
        tot = sum(cost(g) for g in fixed) + sum(c for _, c in seq)
        per = tot / ngaps
        out = []; k = 0; cum = 0
        for gi in range(ngaps):
            g = list(fixed[gi]); cum += cost(fixed[gi])
            while k < len(seq) and (cum + seq[k][1] / 2 <= per * (gi + 1) or gi == ngaps - 1):
                g.append(seq[k][0]); cum += seq[k][1]; k += 1
            out.append(g)
        return out
    a.wait(lg=["kf0"])
    e("s_nop 1")
    for m in qk(0): e(m)
    e("s_nop 7"); e("s_nop 7")
    for n in range(48):
        i, j = divmod(n, 3)
        mf = (qk(n+1) if n + 1 < 48 else []) + (pv(n-1) if n >= 1 else [])
        nq = 8 if n + 1 < 48 else 0
        ng = len(mf)
        fixed = [[] for _ in range(ng)]
        pre = []
        if j == 0:
            need = [f"V{i}"] + ([f"K{i+1}"] if i + 1 <= 15 else [])
            fixed[0] += [('wait', need, None), "s_barrier"]
            for u in range(2):
                for t in range(4):
                    gi = (nq + u*4 + t) if n >= 1 else (u*4 + t) % ng
                    if n == 0 and gi == 0: gi = 1
                    fixed[min(gi, ng-1)] += v_reads(i, u, t)
        if j == 1:
            if i + 1 <= 15:
                for c in range(8): fixed[c] += [k_read(i+1, c)]
            if i + 4 <= 15:
                d = dmaK(i+4)
                for k, it in enumerate(d): fixed[9 + k] += [it]
        if j == 2 and i + 3 <= 15:
            d = dmaV(i+3)
            for k, it in enumerate(d): fixed[2 + 2*k] += [it]
        gaps = fill(fixed, sm(n), ng)
        for mi, m in enumerate(mf):
            if j == 2 and mi == 0 and nq: a.wait(lg=[f"kf{i+1}"])
            if j == 1 and mi == nq: a.wait(lg=[f"vf{i}"])
            a.do(m); a.do(gaps[mi])
        if n in STAMP_SLOTS: stamp()
    stamp()
    e("s_nop 1")
    for m in pv(47): e(m)
    for j in range(3):
        l = vL + j
        e(f"v_mov_b32 v{vT}, v{l}")
        e("s_nop 1")
        e(f"v_permlane32_swap_b32 v{vT}, v{l}")
        e("s_nop 1")
        e(f"v_add_f32 v{l}, v{l}, v{vT}")
        e("s_nop 0")
        e(f"v_rcp_f32 v{vT+2+2*j}, v{l}")
        e("s_nop 0")
        e(f"v_mov_b32 v{vT+3+2*j}, v{vT+2+2*j}")
    e(f"v_lshlrev_b32 v{vT+8}, 4, v0")
    e("s_nop 7")
    tmp = [64, 96]
    k = 0
    for j in range(3):
        rinv = vT + 2 + 2*j
        for t in range(4):
            b0 = 64 + 32*(k & 1); pk = b0 + 16
            for r in range(16): e(f"v_accvgpr_read_b32 v{b0+r}, a{aO + (j*4+t)*16 + r}")
            for r in range(16): e(f"v_mul_f32 v{b0+r}, v{b0+r}, v{rinv}")
            for m in range(8): e(f"v_cvt_pk_bf16_f32 v{pk+m}, v{b0+2*m}, v{b0+2*m+1}")
            e(f"s_add_u32 s{sTMP}, s{sOO}, {j*262144 + (t>>1)*4096}")
            for hf in range(2):
                a.vmem(f"buffer_store_dwordx4 v[{pk+4*hf}:{pk+4*hf+3}], v{vT+8}, s[{sO}:{sO+3}], s{sTMP} offen offset:{((t&1)*2+hf)*1024} {oflags}", "O")
            k += 1
    if stamps:
        stamp()
        a.wait(vm="all")
        stamp()
        e(f"s_lshl_b32 s3, s2, 2")
        e(f"s_add_u32 s3, s3, s{sWV}")
        e("s_lshl_b32 s3, s3, 7")
        e(f"s_add_u32 s3, s3, {48*1024*1024}")
        e(f"s_mov_b32 s{sO+2}, 268435456")
        for k in range(32):
            e(f"v_mov_b32 v{64+k}, s{sSTAMP+k}")
        e(f"v_mov_b32 v{vT}, 0")
        e("v_cmp_eq_u32 vcc, 0, v0")
        e("s_and_saveexec_b64 s[6:7], vcc")
        e(f"s_cbranch_execz L_end_{name}")
        for k in range(8):
            e(f"buffer_store_dwordx4 v[{64+4*k}:{67+4*k}], v{vT}, s[{sO}:{sO+3}], s3 offen offset:{16*k}")
    e("s_waitcnt vmcnt(0)")
    e(f"L_end_{name}:")
    e("s_endpgm")
    e(f"{end_label}:")

def gen(path, **kw):
    a = Asm()
    header(a.L, ["; @launch grid=(256,1,1) block=(256,1,1) lds=163840"])
    gen_k1(a, K, **kw)
    kdesc(a.L, K, vgpr=256, agpr=256, sgpr=100)
    open(path, "w").write(a.text())
    return a
if __name__ == "__main__":
    a = gen("k1.s", stamps=True)
    print(len(a.L), "lines")
```

```python
from asmlib import *
MF = "v_mfma_f32_16x16x32_bf16"
STG = 36864
RING = 4
PB = 33554432
BD = 8
AD = 6
ALEAD = 4

def code_prefetch(a, label_base, end_label, vtmp, vdummy, swave, n32k, stmp=6):
    e = a.e
    e(f"s_getpc_b64 s[{stmp}:{stmp+1}]")
    e(f"{label_base}:")
    e(f"v_lshlrev_b32 v{vtmp}, 7, v0")
    for k in range(n32k):
        e(f"v_add_u32 v{vtmp+1}, {k*32768}, v{vtmp}")
        e(f"v_min_u32 v{vtmp+1}, {end_label}-{label_base}, v{vtmp+1}")
        a.vmem(f"global_load_dword v{vdummy}, v{vtmp+1}, s[{stmp}:{stmp+1}]", "PF")

def gen_k2z(a, name, stamps=False, prefetch_code=True, end_label="L_k2z_code_end", oflags="", wflags="", pflags="sc1", rot=True):
    e = a.e
    sW, sO, sP = 8, 12, 16
    sMB, sWcur, sWlim, sWbase, sOB, sOr, sPS, sWV, sBR, sKQ, sB, sNC = 20, 21, 22, 23, 24, 25, 26, 27, 28, 29, 30, 31
    sTMP = 32
    vWD, vWD2, vOV, vA1, vA2, vL16, vT, vDUMMY = 1, 9, 10, 13, 21, 22, 24, 31
    vA = 32
    vACC = vA + 4*AD
    aB = 0
    nstamp = [0]
    def stamp():
        if not stamps: return
        k = nstamp[0]; nstamp[0] += 1
        a.wait(lg="all")
        e("s_memtime s[96:97]"); e("s_memrealtime s[98:99]"); e("s_waitcnt lgkmcnt(0)")
        e(f"s_mov_b32 s{64+k}, s96"); e(f"s_mov_b32 s{80+k}, s98")
    kstart(a.L, name)
    e("s_cmp_ge_u32 s2, 256")
    e(f"s_cbranch_scc1 L_end_{name}")
    e("s_load_dwordx2 s[48:49], s[0:1], 32")
    e("s_load_dwordx2 s[50:51], s[0:1], 72")
    e("s_load_dwordx2 s[54:55], s[0:1], 96")
    if prefetch_code: code_prefetch(a, "L_pf_base2", end_label, vT, vDUMMY, None, 1)
    if stamps:
        e("s_memrealtime s[98:99]"); e("s_waitcnt lgkmcnt(0)"); e("s_mov_b32 s95, s98")
    e(f"v_lshrrev_b32 v{vT}, 6, v0")
    e("v_and_b32 v0, 63, v0")
    e(f"v_readfirstlane_b32 s{sWV}, v{vT}")
    e("s_and_b32 s3, s2, 7")
    e(f"s_lshr_b32 s{sBR}, s3, 2")
    e(f"s_and_b32 s{sKQ}, s3, 3")
    e("s_lshr_b32 s3, s2, 3")
    e(f"s_and_b32 s{sB}, s3, 7")
    e(f"s_lshr_b32 s{sNC}, s3, 3")
    if rot:
        e(f"s_add_u32 s4, s{sNC}, s{sB}"); e("s_and_b32 s4, s4, 3"); e("s_lshl_b32 s4, s4, 1")
    else:
        e("s_mov_b32 s4, 0")
    e(f"s_lshl_b32 s5, s{sKQ}, 10"); e(f"s_lshl_b32 s3, s{sWV}, 5"); e("s_add_u32 s5, s5, s3"); e("s_mul_i32 s5, s5, 1152")
    e(f"s_mul_i32 s3, s{sNC}, 288"); e(f"s_add_u32 s{sWbase}, s5, s3")
    e(f"s_add_u32 s{sWlim}, s{sWbase}, {8*147456}")
    e(f"s_mul_i32 s3, s4, 147456"); e(f"s_add_u32 s{sWcur}, s{sWbase}, s3")
    e(f"s_mul_i32 s{sMB}, s{sWV}, 9216")
    e(f"s_lshl_b32 s5, s{sBR}, 3"); e(f"s_add_u32 s5, s5, s{sB}"); e(f"s_mul_i32 s5, s5, {6*262144}")
    e(f"s_lshl_b32 s3, s{sKQ}, 16"); e(f"s_add_u32 s{sOB}, s5, s3")
    e(f"s_lshl_b32 s{sOr}, s4, 13")
    e(f"s_lshl_b32 s5, s{sBR}, 2"); e(f"s_add_u32 s5, s5, s{sKQ}"); e("s_lshl_b32 s5, s5, 3"); e(f"s_add_u32 s5, s5, s{sB}")
    e("s_lshl_b32 s5, s5, 2"); e(f"s_add_u32 s5, s5, s{sNC}"); e("s_mul_i32 s5, s5, 55296")
    e(f"s_mul_i32 s3, s{sWV}, 13824"); e("s_add_u32 s5, s5, s3"); e(f"s_add_u32 s{sPS}, s5, {PB}")
    t0, t1, t2, t3, t4, t5 = [vT + i for i in range(6)]
    G, q = t4, t5
    e(f"v_lshrrev_b32 v{G}, 4, v0")
    e(f"v_and_b32 v{q}, 15, v0")
    for m in range(8):
        e(f"v_or_b32 v{t0}, {((m>>1)&1)<<2}, v{G}")
        e(f"v_lshlrev_b32 v{t0}, 1, v{t0}")
        e(f"v_xor_b32 v{t0}, v{q}, v{t0}")
        e(f"v_lshlrev_b32 v{t0}, 4, v{t0}")
        e(f"v_mul_u32_u24 v{t1}, 1152, v{G}")
        e(f"v_add_u32 v{t0}, v{t0}, v{t1}")
        e(f"v_add_u32 v{vWD+m}, {4*m*1152 - 1024*(m&3)}, v{t0}")
    e(f"v_lshrrev_b32 v{t0}, 1, v0")
    e(f"v_and_b32 v{t1}, 0x13, v{t0}")
    e(f"v_and_b32 v{t2}, 4, v{t0}"); e(f"v_lshlrev_b32 v{t2}, 1, v{t2}"); e(f"v_or_b32 v{t1}, v{t1}, v{t2}")
    e(f"v_and_b32 v{t2}, 8, v{t0}"); e(f"v_lshrrev_b32 v{t2}, 1, v{t2}"); e(f"v_or_b32 v{t1}, v{t1}, v{t2}")
    e(f"v_mul_u32_u24 v{t1}, 1152, v{t1}")
    e(f"v_and_b32 v{t2}, 1, v0"); e(f"v_lshlrev_b32 v{t2}, 4, v{t2}")
    e(f"v_add_u32 v{t1}, v{t1}, v{t2}"); e(f"v_add_u32 v{vWD2}, 256, v{t1}")
    e(f"v_lshrrev_b32 v{t0}, 1, v{G}"); e(f"v_lshlrev_b32 v{t0}, 10, v{t0}")
    e(f"v_and_b32 v{t1}, 1, v{G}"); e(f"v_lshlrev_b32 v{t1}, 9, v{t1}"); e(f"v_add_u32 v{t0}, v{t0}, v{t1}")
    e(f"v_lshlrev_b32 v{t1}, 4, v{q}"); e(f"v_add_u32 v{t0}, v{t0}, v{t1}")
    e(f"s_mul_i32 s3, s{sWV}, 3")
    for jq in range(3):
        e(f"s_add_u32 s5, s3, {jq}")
        e(f"s_lshr_b32 s6, s5, 1"); e("s_lshl_b32 s6, s6, 18")
        e(f"s_and_b32 s7, s5, 1"); e("s_lshl_b32 s7, s7, 8"); e("s_add_u32 s6, s6, s7")
        e(f"v_add_u32 v{vOV+jq}, s6, v{t0}")
    e("s_waitcnt lgkmcnt(0)")
    e(f"s_cmp_eq_u32 s{sBR}, 0")
    e(f"s_cselect_b32 s{sW}, s48, s50"); e(f"s_cselect_b32 s{sW+1}, s49, s51")
    e(f"s_mov_b32 s{sW+2}, 4718592"); e(f"s_mov_b32 s{sW+3}, 0x20000")
    e(f"s_mov_b32 s{sO}, s54"); e(f"s_mov_b32 s{sO+1}, s55"); e(f"s_mov_b32 s{sO+2}, 25165824"); e(f"s_mov_b32 s{sO+3}, 0x20000")
    e(f"s_mov_b32 s{sP}, s54"); e(f"s_mov_b32 s{sP+1}, s55"); e(f"s_mov_b32 s{sP+2}, {PB + 256*55296 + (4*1024*1024 if stamps else 0)}"); e(f"s_mov_b32 s{sP+3}, 0x20000")
    def dmaW(tau):
        slot = (tau % RING)*STG
        it = [[f"s_add_u32 m0, s{sMB}, {slot}", f"s_mov_b32 s{sTMP}, s{sWcur}"]]
        for m in range(8):
            if m == 4: it.append([f"s_add_u32 m0, s{sMB}, {slot + 4096}", "s_nop 0"])
            it.append(('vm', f"buffer_load_dwordx4 v{vWD+m}, s[{sW}:{sW+3}], s{sTMP} offen offset:{(m&3)*1024} {wflags} lds", f"W{tau}"))
        it.append(f"s_add_u32 m0, s{sMB}, {slot + 8192}")
        it.append([f"s_add_u32 s{sWcur}, s{sWcur}, 147456",
                   ('vm', f"buffer_load_dwordx4 v{vWD2}, s[{sW}:{sW+3}], s{sTMP} offen {wflags} lds", f"W{tau}"),
                   f"s_cmp_eq_u32 s{sWcur}, s{sWlim}", f"s_cselect_b32 s{sWcur}, s{sWbase}, s{sWcur}"])
        return it
    def ldB(kap):
        tau, kl = divmod(kap, 4)
        it = []
        if kl % 2 == 0:
            if kl == 0: it.append(f"s_add_u32 s{sTMP+1}, s{sOB}, s{sOr}")
            else: it.append([f"s_add_u32 s{sTMP+1}, s{sTMP+1}, 4096", f"s_add_u32 s{sOr}, s{sOr}, 8192", f"s_and_b32 s{sOr}, s{sOr}, 0xffff"])
        for jq in range(3):
            r = aB + 12*(kap % BD) + 4*jq
            it.append(('vm', f"buffer_load_dwordx4 a[{r}:{r+3}], v{vOV+jq}, s[{sO}:{sO+3}], s{sTMP+1} offen offset:{(kl&1)*2048} {oflags}", f"B{kap}"))
        return it
    a.do(dmaW(0))
    for kap in range(4): a.do(ldB(kap))
    a.do(dmaW(1))
    for kap in range(4, BD - 1): a.do(ldB(kap))
    kg = G
    r_, c_ = t0, t1
    e(f"v_lshrrev_b32 v{r_}, 2, v{q}"); e(f"v_and_b32 v{c_}, 3, v0")
    e(f"v_lshlrev_b32 v{t2}, 3, v{kg}"); e(f"v_add_u32 v{t2}, v{t2}, v{r_}"); e(f"v_lshlrev_b32 v{t2}, 8, v{t2}")
    e(f"v_and_b32 v{t3}, 1, v{kg}"); e(f"v_lshlrev_b32 v{t3}, 2, v{t3}"); e(f"v_or_b32 v{t3}, v{t3}, v{r_}")
    e(f"v_lshlrev_b32 v{vA2}, 5, v{t3}")
    e(f"v_add_u32 v{t2}, v{t2}, v{vA2}")
    e(f"v_lshlrev_b32 v{c_}, 3, v{c_}"); e(f"v_add_u32 v{t2}, v{t2}, v{c_}")
    for T in range(8): e(f"v_xor_b32 v{vA1+T}, {32*T}, v{t2}")
    e(f"v_lshrrev_b32 v{t2}, 1, v{kg}"); e(f"v_lshlrev_b32 v{t2}, 9, v{t2}")
    e(f"v_add3_u32 v{vA2}, v{vA2}, v{t2}, v{c_}"); e(f"v_add_u32 v{vA2}, 8192, v{vA2}")
    e(f"v_lshlrev_b32 v{vL16}, 4, v0")
    e(f"v_lshlrev_b32 v{vL16+1}, 3, v0")
    NG = 32*9
    def a_reads(g):
        kap, T = divmod(g, 9); tau, kl = divmod(kap, 4)
        r = vA + 4*(g % AD)
        it = []
        if T == 0 and kl == 0 and tau > 0:
            d = STG if tau % RING else -(RING-1)*STG
            it.append([f"v_add_u32 v{vA1+x}, {d & 0xffffffff:#x}, v{vA1+x}" for x in range(8)] + [f"v_add_u32 v{vA2}, {d & 0xffffffff:#x}, v{vA2}"])
        if T < 8:
            it.append(('lds', f"ds_read_b64_tr_b16 v[{r}:{r+1}], v{vA1+T} offset:{kl*9216}", f"A{g}"))
            it.append(('lds', f"ds_read_b64_tr_b16 v[{r+2}:{r+3}], v{vA1+T} offset:{kl*9216+1024}", f"A{g}"))
        else:
            it.append(('lds', f"ds_read_b64_tr_b16 v[{r}:{r+1}], v{vA2} offset:{kl*9216}", f"A{g}"))
            it.append(('lds', f"ds_read_b64_tr_b16 v[{r+2}:{r+3}], v{vA2} offset:{kl*9216+256}", f"A{g}"))
        return it
    stamp()
    a.wait(vm=["W0"]); e("s_barrier")
    stamp()
    pend = list(dmaW(2))
    for g in range(ALEAD): a.do(a_reads(g))
    for g in range(NG):
        kap, T = divmod(g, 9); tau, kl = divmod(kap, 4)
        if T == 0: a.wait(vm=[f"B{kap}"], lg=[f"A{g}"])
        else: a.wait(lg=[f"A{g}"])
        mf = []
        for jq in range(3):
            acc = vr(vACC + 4*(3*T + jq), 4)
            mf.append(f"{MF} {acc}, {vr(vA+4*(g%AD),4)}, a[{aB+12*(kap%BD)+4*jq}:{aB+12*(kap%BD)+4*jq+3}], {acc if kap else 0}")
        gaps = [[], [], []]
        gn = g + ALEAD
        if gn < NG:
            kapn, Tn = divmod(gn, 9); taun, kln = divmod(kapn, 4)
            if Tn == 0 and kln == 0:
                gaps[0] += [('wait', [f"W{taun}"], None), "s_barrier"]
                if taun + 2 < 8: pend += dmaW(taun + 2)
            rd = a_reads(gn)
            gaps[0] += rd[:-1]; gaps[1] += rd[-1:]
        if T == 1 and kap + BD - 1 < 32: pend += ldB(kap + BD - 1)
        if pend: gaps[2].append(pend.pop(0))
        a.block(mf, gaps)
        if g == 143: stamp()
    assert not pend
    stamp()
    e("s_nop 7")
    pk = vA
    out0 = 164
    for jq in range(3):
        for p in range(4):
            o = out0 + 16*jq + 4*p
            X = vACC + 4*(3*(2*p) + jq); Y = vACC + 4*(3*(2*p+1) + jq)
            e(f"v_cvt_pk_bf16_f32 v{o}, v{X}, v{X+1}"); e(f"v_cvt_pk_bf16_f32 v{o+1}, v{X+2}, v{X+3}")
            e(f"v_cvt_pk_bf16_f32 v{o+2}, v{Y}, v{Y+1}"); e(f"v_cvt_pk_bf16_f32 v{o+3}, v{Y+2}, v{Y+3}")
        Z = vACC + 4*(24 + jq); o = out0 + 48 + 2*jq
        e(f"v_cvt_pk_bf16_f32 v{o}, v{Z}, v{Z+1}"); e(f"v_cvt_pk_bf16_f32 v{o+1}, v{Z+2}, v{Z+3}")
    e("s_nop 1")
    for jq in range(3):
        for p in range(4):
            o = out0 + 16*jq + 4*p
            e(f"v_permlane16_swap_b32 v{o}, v{o+2}"); e(f"v_permlane16_swap_b32 v{o+1}, v{o+3}")
        e(f"s_add_u32 s{sTMP}, s{sPS}, {jq*4096}")
        for p in range(4):
            o = out0 + 16*jq + 4*p
            a.vmem(f"buffer_store_dwordx4 v[{o}:{o+3}], v{vL16}, s[{sP}:{sP+3}], s{sTMP} offen offset:{p*1024} {pflags}", "P")
    e(f"s_add_u32 s{sTMP}, s{sPS}, 12288")
    for jq in range(3):
        o = out0 + 48 + 2*jq
        a.vmem(f"buffer_store_dwordx2 v[{o}:{o+1}], v{vL16+1}, s[{sP}:{sP+3}], s{sTMP} offen offset:{jq*512} {pflags}", "P")
    if stamps:
        a.wait(vm="all")
        stamp()
        e("s_lshl_b32 s3, s2, 2"); e(f"s_add_u32 s3, s3, s{sWV}"); e("s_lshl_b32 s3, s3, 7"); e(f"s_add_u32 s3, s3, {49*1024*1024}")
        e(f"s_mov_b32 s{sP+2}, 268435456")
        for k in range(32): e(f"v_mov_b32 v{64+k}, s{64+k}")
        e(f"v_mov_b32 v{vT}, 0")
        e("v_cmp_eq_u32 vcc, 0, v0"); e("s_and_saveexec_b64 s[6:7], vcc"); e(f"s_cbranch_execz L_end_{name}")
        for k in range(8):
            e(f"buffer_store_dwordx4 v[{64+4*k}:{67+4*k}], v{vT}, s[{sP}:{sP+3}], s3 offen offset:{16*k}")
    e("s_waitcnt vmcnt(0)")
    e(f"L_end_{name}:")
    e("s_endpgm")
    e(f"{end_label}:")

def gen_k3(a, name, stamps=False, pflags=""):
    e = a.e
    sP, sOUT = 8, 12
    kstart(a.L, name)
    e("s_cmp_ge_u32 s2, 256")
    e(f"s_cbranch_scc1 L_end_{name}")
    e("s_load_dwordx2 s[16:17], s[0:1], 80")
    e("s_load_dwordx2 s[18:19], s[0:1], 96")
    if stamps:
        e("s_memrealtime s[30:31]")
    e("v_lshrrev_b32 v1, 6, v0"); e("v_and_b32 v0, 63, v0")
    e("v_readfirstlane_b32 s20, v1")
    e("s_and_b32 s21, s2, 3")
    e("s_lshr_b32 s3, s2, 2"); e("s_and_b32 s22, s3, 3")
    e("s_lshr_b32 s3, s3, 2"); e("s_and_b32 s23, s3, 7")
    e("s_lshr_b32 s24, s3, 3")
    e("s_lshl_b32 s4, s24, 5"); e("s_add_u32 s4, s4, s23"); e("s_lshl_b32 s4, s4, 2"); e("s_add_u32 s4, s4, s22"); e("s_mul_i32 s4, s4, 55296")
    e("s_mul_i32 s5, s21, 13824"); e("s_add_u32 s4, s4, s5"); e(f"s_add_u32 s4, s4, {PB}")
    e("s_lshl_b32 s5, s20, 10"); e("s_add_u32 s25, s4, s5")
    e("s_lshl_b32 s5, s20, 9"); e("s_add_u32 s26, s4, s5"); e("s_add_u32 s26, s26, 12288")
    e("v_lshlrev_b32 v2, 4, v0"); e("v_lshlrev_b32 v3, 3, v0")
    e("s_mul_i32 s6, s23, 192"); e("s_mul_i32 s7, s21, 48"); e("s_add_u32 s6, s6, s7"); e("s_mul_i32 s6, s6, 2304")
    e("s_mul_i32 s7, s24, 1152"); e("s_add_u32 s6, s6, s7"); e("s_mul_i32 s7, s22, 288"); e("s_add_u32 s27, s6, s7")
    e("v_and_b32 v4, 15, v0"); e("v_mul_u32_u24 v4, 2304, v4")
    e("v_lshrrev_b32 v5, 4, v0")
    e("v_and_b32 v6, 1, v5"); e("v_lshlrev_b32 v6, 5, v6"); e("v_lshrrev_b32 v7, 1, v5"); e("v_lshlrev_b32 v7, 4, v7")
    e("v_add3_u32 v6, v4, v6, v7")
    e("v_lshlrev_b32 v7, 3, v5"); e("v_add_u32 v7, v4, v7")
    e("s_waitcnt lgkmcnt(0)")
    e(f"s_mov_b32 s{sP}, s18"); e(f"s_mov_b32 s{sP+1}, s19"); e(f"s_mov_b32 s{sP+2}, {PB + 256*55296}"); e(f"s_mov_b32 s{sP+3}, 0x20000")
    e(f"s_mov_b32 s{sOUT}, s16"); e(f"s_mov_b32 s{sOUT+1}, s17"); e(f"s_mov_b32 s{sOUT+2}, 3538944"); e(f"s_mov_b32 s{sOUT+3}, 0x20000")
    D = 16
    for jq in range(3):
        for kq in range(4):
            e(f"s_add_u32 s28, s25, {kq*1769472 + jq*4096}")
            r = D + 16*jq + 4*kq
            a.vmem(f"buffer_load_dwordx4 v[{r}:{r+3}], v2, s[{sP}:{sP+3}], s28 offen {pflags}", f"L{jq}")
    E = D + 48
    e("s_cmp_eq_u32 s20, 3")
    e(f"s_cbranch_scc1 L_k3_skip8a")
    for kq in range(4):
        e(f"s_add_u32 s28, s26, {kq*1769472}")
        e(f"buffer_load_dwordx2 v[{E+2*kq}:{E+2*kq+1}], v3, s[{sP}:{sP+3}], s28 offen {pflags}")
    e("L_k3_skip8a:")
    e("v_mov_b32 v8, 0xffff0000")
    e("s_waitcnt vmcnt(0)")
    def red(srcs, n, dst, tmp):
        for d in range(n):
            lo, hi, x = tmp, tmp+1, tmp+2
            e(f"v_lshlrev_b32 v{lo}, 16, v{srcs[0]+d}"); e(f"v_and_b32 v{hi}, v8, v{srcs[0]+d}")
            for k in range(1, 4):
                e(f"v_lshlrev_b32 v{x}, 16, v{srcs[k]+d}"); e(f"v_add_f32 v{lo}, v{lo}, v{x}")
                e(f"v_and_b32 v{x}, v8, v{srcs[k]+d}"); e(f"v_add_f32 v{hi}, v{hi}, v{x}")
            e(f"v_cvt_pk_bf16_f32 v{dst+d}, v{lo}, v{hi}")
    R = 80
    for jq in range(3):
        red([D + 16*jq + 4*k for k in range(4)], 4, R + 4*jq, 10)
        e(f"s_lshl_b32 s5, s20, 6"); e(f"s_add_u32 s28, s27, s5"); e(f"s_add_u32 s28, s28, {jq*16*2304}")
        e(f"buffer_store_dwordx4 v[{R+4*jq}:{R+4*jq+3}], v6, s[{sOUT}:{sOUT+3}], s28 offen")
    e("s_cmp_eq_u32 s20, 3")
    e(f"s_cbranch_scc1 L_k3_skip8b")
    red([E + 2*k for k in range(4)], 2, R + 12, 10)
    e(f"s_mul_i32 s5, s20, {16*2304}"); e("s_add_u32 s28, s27, s5"); e("s_add_u32 s28, s28, 256")
    e(f"buffer_store_dwordx2 v[{R+12}:{R+13}], v7, s[{sOUT}:{sOUT+3}], s28 offen")
    e("L_k3_skip8b:")
    if stamps:
        e("s_waitcnt vmcnt(0)")
        e("s_memrealtime s[32:33]"); e("s_waitcnt lgkmcnt(0)")
        e(f"s_mov_b32 s{sP+2}, 268435456")
        e("s_lshl_b32 s3, s2, 2"); e("s_add_u32 s3, s3, s20"); e("s_lshl_b32 s3, s3, 3"); e(f"s_add_u32 s3, s3, {50*1024*1024}")
        e("v_mov_b32 v10, s30"); e("v_mov_b32 v11, s32"); e("v_mov_b32 v12, 0")
        e("v_cmp_eq_u32 vcc, 0, v0"); e("s_and_saveexec_b64 s[6:7], vcc"); e(f"s_cbranch_execz L_end_{name}")
        e(f"buffer_store_dwordx2 v[10:11], v12, s[{sP}:{sP+3}], s3 offen")
    e("s_waitcnt vmcnt(0)")
    e(f"L_end_{name}:")
    e("s_endpgm")
```

```python
import sys
from asmlib import *
import gen_k1, gen_k2, gen_k2z
HDR = open('concat_heads__mha_block_cached__mha_block_cached__near_ridge.s.ref').read().split("; Override")[0]
def gen(path, k1kw={}, k2kw={}, k3kw={}, mode="z"):
    a = Asm()
    a.L += HDR.rstrip("\n").split("\n")
    if mode == "w":
        header(a.L, ["; @launch kernel=attn_kernel grid=(256,1,1) block=(256,1,1) lds=163840",
                     f"; @launch kernel=oproj_kernel grid=(216,1,1) block=(256,1,1) lds={gen_k2.RING*gen_k2.STG}"])
    else:
        header(a.L, ["; @launch kernel=attn_kernel grid=(256,1,1) block=(256,1,1) lds=163840",
                     f"; @launch kernel=oproj_kernel grid=(256,1,1) block=(256,1,1) lds={gen_k2z.RING*gen_k2z.STG}",
                     f"; @launch kernel=reduce_kernel grid=(256,1,1) block=(256,1,1) lds=0"])
    gen_k1.gen_k1(a, "attn_kernel", **k1kw)
    b = Asm()
    if mode == "w": gen_k2.gen_k2(b, "oproj_kernel", **k2kw)
    else: gen_k2z.gen_k2z(b, "oproj_kernel", **k2kw)
    a.L += b.L
    if mode != "w":
        c = Asm(); gen_k2z.gen_k3(c, "reduce_kernel", **k3kw); a.L += c.L
    kdesc(a.L, "attn_kernel", vgpr=256, agpr=256, sgpr=100)
    if mode == "w": kdesc(a.L, "oproj_kernel", vgpr=256, agpr=0, sgpr=100)
    else:
        kdesc(a.L, "oproj_kernel", vgpr=256, agpr=96, sgpr=100)
        kdesc(a.L, "reduce_kernel", vgpr=96, agpr=0, sgpr=40)
    open(path, "w").write(a.text())
    return a
if __name__ == "__main__":
    a = gen(sys.argv[1] if len(sys.argv) > 1 else "all.s")
    print(len(a.L), "lines")
```
